```python
import torch

def _softmax(x, axis=-1):
    return torch.softmax(x, dim=axis)
def _gelu(x):
    return torch.nn.functional.gelu(x, approximate="tanh")
def _silu(x):
    return torch.nn.functional.silu(x)
def _sigmoid(x):
    return torch.sigmoid(x)
def _layernorm(x, axis=-1, eps=1e-5):
    m = x.mean(dim=axis, keepdim=True)
    v = x.var(dim=axis, keepdim=True, unbiased=False)
    return (x - m) / torch.sqrt(v + eps)
def _scatter_add(tgt, idx, src, axis=0):
    return tgt.clone().index_add_(axis, idx, src)
def _segment_sum(src, seg, n):
    out = torch.zeros((n,) + src.shape[1:], dtype=src.dtype)
    return out.index_add_(0, seg, src)
def _pad(x, pw):
    flat = tuple(v for pair in reversed(pw) for v in pair)
    return torch.nn.functional.pad(x, flat)

kernel_name = 'standalone__window_attn_swin__vision'

def setup_inputs():

    _w = (lambda a: (lambda t: t.to(torch.bfloat16) if t.is_floating_point() else t)(torch.as_tensor(a)))
    H = W = 512
    C = 96
    ws = 8
    nh = 4
    shift = ws // 2
    coords = torch.stack(torch.meshgrid(torch.arange(ws), torch.arange(ws), indexing='ij'), 0).reshape(2, -1)
    rel = coords[:, :, None] - coords[:, None, :]
    rel[0] += ws - 1
    rel[1] += ws - 1
    rel[0] *= 2 * ws - 1
    rp_idx = rel.sum(0).to(torch.int64)
    img_mask = torch.zeros((1, H, W, 1), dtype=float)
    cnt = 0
    for hs in (slice(0, H - ws), slice(H - ws, H - shift), slice(H - shift, H)):
        for vs in (slice(0, W - ws), slice(W - ws, W - shift), slice(W - shift, W)):
            img_mask[:, hs, vs, :] = cnt
            cnt += 1
    mw = img_mask.reshape(1, H // ws, ws, W // ws, ws, 1).permute(0, 1, 3, 2, 4, 5).reshape(-1, ws * ws)
    am = mw[:, :, None] - mw[:, None, :]
    attn_mask = torch.where(am != 0, -100.0, 0.0).to(float)
    return {
        "x": _w((lambda *s: torch.randn(*s, dtype=torch.bfloat16) * 1.6)(1, H, W, C)),
        "wqkv": _w((lambda *s: torch.randn(*s, dtype=torch.bfloat16) * 1.6)(C, 3 * C) * 0.02),
        "wo": _w((lambda *s: torch.randn(*s, dtype=torch.bfloat16) * 0.05)(C, C) * 0.02),
        "rpb": _w((lambda *s: torch.randn(*s, dtype=torch.bfloat16) * 0.4)((2 * ws - 1) * (2 * ws - 1), nh)),
        "rp_idx": _w(rp_idx),
        "attn_mask": _w(attn_mask),
    }

def reference(x, wqkv, wo, rpb, rp_idx, attn_mask):
    B, H, W, C = x.shape
    N = rp_idx.shape[0]
    ws = int(round(N ** 0.5))
    nh = rpb.shape[-1]
    hd = C // nh
    shift = ws // 2
    xs = torch.roll(x, (-shift, -shift), (1, 2))
    nWh = H // ws
    nWw = W // ws
    xw = (lambda x, *d: x.permute(*d))(xs.reshape(B, nWh, ws, nWw, ws, C), 0, 1, 3, 2, 4, 5).reshape(B * nWh * nWw, N, C)
    qkv = (lambda x, *d: x.permute(*d))(torch.einsum('wnc,cd->wnd', xw, wqkv).reshape(-1, N, 3, nh, hd), 2, 0, 3, 1, 4)
    q, k, v = qkv[0], qkv[1], qkv[2]
    attn = torch.einsum('whid,whjd->whij', q, k) * (hd ** -0.5)
    bias = (lambda x, *d: x.permute(*d))(rpb[rp_idx.reshape(-1)].reshape(N, N, nh), 2, 0, 1)
    attn = attn + bias[None, :, :, :]
    attn = (attn.reshape(B, nWh * nWw, nh, N, N) + attn_mask[None, :, None, :, :]).reshape(-1, nh, N, N)
    attn = _softmax(attn, axis=-1)
    out = (lambda x, *d: x.permute(*d))(torch.einsum('whij,whjd->whid', attn, v), 0, 2, 1, 3).reshape(-1, N, C)
    out = torch.einsum('wnc,cd->wnd', out, wo)
    out = (lambda x, *d: x.permute(*d))(out.reshape(B, nWh, nWw, ws, ws, C), 0, 1, 3, 2, 4, 5).reshape(B, H, W, C)
    return torch.roll(out, (shift, shift), (1, 2))
```

```python
import re

def vr(a, n=1):
    return f"v{a}" if n == 1 else f"v[{a}:{a+n-1}]"
def sr(a, n=1):
    return f"s{a}" if n == 1 else f"s[{a}:{a+n-1}]"
def R(a, n=1):
    return list(range(a, a + n))

TRANS = ("v_exp_f32", "v_rcp_f32", "v_log_f32", "v_rsq_f32", "v_sqrt_f32")

class Em:
    def __init__(self):
        self.out = []
        self.reset()
        self.nins = 0
        self.stats = {}
    def reset(self):
        self.t = 0
        self.vw = {}
        self.mfD = {}
        self.mfC = {}
        self.stw = {}
        self.sw = {}
        self.lg = []
        self.vm = []
    def raw(self, s):
        self.out.append(s)
    def comment(self, s):
        self.out.append("    ; " + s)
    def label(self, s):
        self.out.append(s + ":")
    def _emit(self, s, states=1):
        self.out.append("    " + s)
        self.t += states
        self.nins += 1
        k = s.split()[0]
        self.stats[k] = self.stats.get(k, 0) + 1
    def nop(self, n):
        while n > 0:
            k = min(n, 16)
            self._emit(f"s_nop {k-1}", k)
            n -= k
    def need(self, t_prod, dist):
        have = self.t - t_prod - 1
        if have < dist:
            self.nop(dist - have)
    def _waits(self, regs):
        regs = set(regs)
        lg = None
        for i, d in enumerate(self.lg):
            if d & regs: lg = i
        vm = None
        for i, d in enumerate(self.vm):
            if d & regs: vm = i
        parts = []
        if vm is not None:
            n = len(self.vm) - 1 - vm
            parts.append(f"vmcnt({n})"); self.vm = self.vm[vm+1:]
        if lg is not None:
            n = len(self.lg) - 1 - lg
            parts.append(f"lgkmcnt({n})"); self.lg = self.lg[lg+1:]
        if parts:
            self._emit("s_waitcnt " + " ".join(parts))
    def wait(self, vm=None, lg=None):
        parts = []
        if vm is not None:
            parts.append(f"vmcnt({vm})"); self.vm = self.vm[len(self.vm)-vm:] if vm else []
        if lg is not None:
            parts.append(f"lgkmcnt({lg})"); self.lg = self.lg[len(self.lg)-lg:] if lg else []
        self._emit("s_waitcnt " + " ".join(parts))
    def _mf_dep(self, regs, dist=12):
        for r in regs:
            if r in self.mfD: self.need(self.mfD[r][0], dist)
    def valu(self, text, w=(), r=(), sr_=(), sw=(), perm=False, rl=False):
        op = text.split()[0]
        base = op.replace("_e64", "").replace("_e32", "")
        trans = base in TRANS
        self._waits(list(w) + list(r))
        self._mf_dep(list(w) + list(r))
        for x in w:
            if x in self.mfC: self.need(self.mfC[x], 7)
            if x in self.stw: self.need(self.stw[x], 2)
        for x in r:
            if x in self.vw:
                tp, k = self.vw[x]
                if k == "trans" and not trans: self.need(tp, 1)
                if perm: self.need(tp, 2)
                if rl: self.need(tp, 1)
        if perm:
            for x in w:
                if x in self.vw: self.need(self.vw[x][0], 2)
        for x in sr_:
            if x in self.sw: self.need(self.sw[x], 2)
        t = self.t
        self._emit(text)
        for x in w:
            self.vw[x] = (t, "trans" if trans else "valu"); self.mfD.pop(x, None)
        for x in sw: self.sw[x] = t
    def mfma(self, D, A, B, C=None, k8=False):
        n = 2 if k8 else 4
        a, b, d = R(A, n), R(B, n), R(D, 16)
        cin = d if C is None else []
        self._waits(a + b + d)
        for x in a + b + cin:
            if x in self.vw: self.need(self.vw[x][0], 2)
        self._mf_dep(a + b, 12)
        for x in d:
            if x in self.mfD:
                tp, base = self.mfD[x]
                if C is None and base == D: pass
                elif C is None: self.need(tp, 10)
                else: self.need(tp, 10)
            if x in self.stw: self.need(self.stw[x], 2)
        name = "v_mfma_f32_32x32x8_bf16" if k8 else "v_mfma_f32_32x32x16_bf16"
        cs = vr(D, 16) if C is None else "0"
        t = self.t
        self._emit(f"{name} {vr(D,16)}, {vr(A,n)}, {vr(B,n)}, {cs}")
        for x in d:
            self.mfD[x] = (t, D); self.vw.pop(x, None)
        for x in cin: self.mfC[x] = t
    def _lds_room(self):
        if len(self.lg) >= 15:
            self.wait(lg=13)
    def ds_read(self, D, n, addr, off=0, op=None):
        op = op or {1: "ds_read_b32", 2: "ds_read_b64", 4: "ds_read_b128"}[n]
        d = R(D, n)
        self._waits(d + [addr]); self._mf_dep(d + [addr]); self._lds_room()
        for x in d:
            if x in self.stw: self.need(self.stw[x], 2)
        assert 0 <= off < 65536, off
        self._emit(f"{op} {vr(D,n)}, {vr(addr)} offset:{off}")
        self.lg.append(set(d))
        for x in d:
            self.vw.pop(x, None); self.mfD.pop(x, None)
    def ds_write(self, addr, S, n, off=0):
        op = {1: "ds_write_b32", 2: "ds_write_b64", 4: "ds_write_b128"}[n]
        s = R(S, n)
        self._waits(s + [addr]); self._mf_dep(s + [addr]); self._lds_room()
        assert 0 <= off < 65536, off
        self._emit(f"{op} {vr(addr)}, {vr(S,n)} offset:{off}")
        self.lg.append(set())
    def _sdep(self, srd, soff):
        for x in R(srd, 4) + ([soff] if isinstance(soff, int) else []):
            if x in self.sw: self.need(self.sw[x], 5)
    def bload(self, D, n, voff, srd, soff=None, off=0, flags=""):
        op = {1: "buffer_load_dword", 2: "buffer_load_dwordx2", 4: "buffer_load_dwordx4"}[n]
        d = R(D, n)
        self._waits(d + [voff]); self._mf_dep(d + [voff]); self._sdep(srd, soff)
        for x in d:
            if x in self.stw: self.need(self.stw[x], 2)
        assert 0 <= off < 4096 and len(self.vm) < 60
        so = "0" if soff is None else sr(soff)
        self._emit(f"{op} {vr(D,n)}, {vr(voff)}, {sr(srd,4)}, {so} offen offset:{off} {flags}".rstrip())
        self.vm.append(set(d))
        for x in d:
            self.vw.pop(x, None); self.mfD.pop(x, None)
    def bstore(self, S, n, voff, srd, soff=None, off=0, flags=""):
        op = {1: "buffer_store_dword", 2: "buffer_store_dwordx2", 4: "buffer_store_dwordx4"}[n]
        s = R(S, n)
        self._waits(s + [voff]); self._mf_dep(s + [voff]); self._sdep(srd, soff)
        assert 0 <= off < 4096 and len(self.vm) < 60
        so = "0" if soff is None else sr(soff)
        t = self.t
        self._emit(f"{op} {vr(S,n)}, {vr(voff)}, {sr(srd,4)}, {so} offen offset:{off} {flags}".rstrip())
        self.vm.append(set())
        if n >= 3:
            for x in s: self.stw[x] = t
    def s(self, text):
        self._emit(text)
    def settle(self):
        worst = 0
        for x, (tp, b) in self.mfD.items(): worst = max(worst, 12 - (self.t - tp - 1))
        for x, (tp, k) in self.vw.items(): worst = max(worst, 2 - (self.t - tp - 1))
        for x, tp in self.stw.items(): worst = max(worst, 2 - (self.t - tp - 1))
        for x, tp in self.sw.items(): worst = max(worst, 5 - (self.t - tp - 1))
        if worst > 0: self.nop(worst)
    def cvt(self, d, a, b): self.valu(f"v_cvt_pk_bf16_f32 v{d}, v{a}, v{b}", [d], [a, b])
    def exp(self, d, a): self.valu(f"v_exp_f32_e64 v{d}, v{a}", [d], [a])
    def rcp(self, d, a): self.valu(f"v_rcp_f32_e64 v{d}, v{a}", [d], [a])
    def mul(self, d, a, b): self.valu(f"v_mul_f32_e64 v{d}, v{a}, v{b}", [d], [a, b])
    def add(self, d, a, b): self.valu(f"v_add_f32_e64 v{d}, v{a}, v{b}", [d], [a, b])
    def text(self): return "\n".join(self.out) + "\n"
```

```python
import sys, math, struct
from emit import *

NAME = "standalone__window_attn_swin__vision"
def f32(x): return struct.unpack("<I", struct.pack("<f", x))[0]
LOG2E = 1.4426950408889634
CSCALE = LOG2E / math.sqrt(24.0)
MASKV = 100.0 * LOG2E
ROW = 98304
NBYTES = 50331648

class Cfg:
    ldflags = "nt"
    stflags = ""
    prio = True
    late_x = True
    thr = 2.0**30

def gen(cfg):
    e = Em()
    X0, T0, T1, Q0, K0, V0 = 0, 48, 64, 80, 128, 176
    vWb, vB0, vB1, vSt, vSl, vG, vChk, vBb = 240, 241, 242, 243, 244, 247, 250, 251
    vT = 252
    SX, SO, SW, SWO, SR = 16, 20, 24, 28, 32
    sWave, sWh, sWw0, sWwN, sWwC = 36, 37, 38, 39, 40
    sLd, sSt = 44, 48
    sVm = 52
    sRowAdj, sPend, sRedo, sCurE, sCurSlow, sNextE, sNextSlow, sHasNext, sRow0, sRow1 = 62, 63, 64, 65, 66, 67, 68, 69, 70, 71
    sT = 72
    NT = 10
    SBQ = NT * 1024
    WOB = 6 * SBQ
    BIAS = WOB + 6 * 3072
    BMASK = 11520
    STAGE = BIAS + 2 * BMASK
    STW = 6656
    LDS = STAGE + 8 * STW
    colbase = [0, 32, 64, 96, 128, 160, 192, 216, 240, 264]
    def Xr(it, s): return X0 + 24 * it + 4 * s
    def Qr(it, p): return Q0 + 24 * it + p
    def Kr(h, jt, p): return K0 + 12 * h + 6 * jt + p
    def Vr(h, p): return V0 + 16 * h + p

    hdr = open("cdna_kernels/" + NAME + ".s.ref").read().split("; Override launch")[0]
    e.raw(hdr.rstrip())
    e.raw(f"; @launch grid=(256,1,1) block=(512,1,1) lds={LDS}")
    e.raw('.amdgcn_target "amdgcn-amd-amdhsa--gfx950"')
    e.raw(".text")
    e.raw(f".globl {NAME}_kernel")
    e.raw(".p2align 8")
    e.raw(f".type {NAME}_kernel,@function")
    e.label(f"{NAME}_kernel")
    e.s("s_cmp_ge_u32 s2, 256")
    e.s("s_cbranch_scc1 L_end")
    e.s("s_load_dwordx8 s[4:11], s[0:1], 0")
    e.s("s_load_dwordx2 s[12:13], s[0:1], 48")
    L = 253; tA = 254; tB = 255; tC = 252
    e.valu(f"v_lshrrev_b32 v{tA}, 6, v0", [tA], [0])
    e.valu(f"v_and_b32 v{L}, 63, v0", [L], [0])
    e.valu(f"v_readfirstlane_b32 s{sWave}, v{tA}", [], [tA], sw=[sWave], rl=True)
    e.valu(f"v_lshlrev_b32 v{vWb}, 4, v{L}", [vWb], [L])
    e.s(f"s_lshr_b32 s{sWh}, s2, 2")
    e.s(f"s_and_b32 s{sWw0}, s2, 3")
    e.s(f"s_lshl_b32 s{sWw0}, s{sWw0}, 4")
    e.nop(2)
    e.s(f"s_add_u32 s{sWw0}, s{sWw0}, s{sWave}")
    e.s(f"s_lshl_b32 s{sT}, s{sWh}, 3")
    e.s(f"s_add_u32 s{sRow0}, s{sT}, 4")
    e.s(f"s_mul_i32 s{sRow0}, s{sRow0}, {ROW}")
    e.s(f"s_add_u32 s{sRow1}, s{sT}, 8")
    e.s(f"s_and_b32 s{sRow1}, s{sRow1}, 511")
    e.s(f"s_mul_i32 s{sRow1}, s{sRow1}, {ROW}")
    e.s(f"s_cmp_eq_u32 s{sWh}, 63")
    e.s(f"s_cselect_b32 s{sRowAdj}, {BMASK}, 0")
    e.s(f"s_mov_b32 s{sVm}, 0x00ffffff")
    e.s(f"s_mov_b32 s{sVm+1}, 0x00ffffff")
    e.s(f"s_mov_b32 s{sPend}, 1")
    e.s(f"s_mov_b32 s{sRedo}, 0")
    e.s(f"s_mov_b32 s{sNextE}, 0")
    e.s(f"s_mov_b32 s{sNextSlow}, 0")
    e.s(f"s_mov_b32 s{sWwN}, s{sWw0}")
    e.valu(f"v_mov_b32 v{vG}, v{vWb}", [vG], [vWb])
    e.valu(f"v_mov_b32 v{tA}, 1024", [tA])
    e.valu(f"v_mov_b32 v{tB}, {ROW-512}", [tB])
    e.valu(f"v_cmp_gt_u32 vcc, 32, v{L}", [], [L], sw=["vcc"])
    e.valu(f"v_add_u32 v{vG+2}, {ROW+512}, v{vWb}", [vG+2], [vWb])
    e.valu(f"v_cndmask_b32 v{tA}, v{tB}, v{tA}, vcc", [tA], [tA, tB], sr_=["vcc"])
    e.valu(f"v_add_u32 v{vG+1}, v{tA}, v{vWb}", [vG+1], [tA, vWb])

    def next_offsets():
        e.s(f"s_mul_i32 s{sT}, s{sWwN}, 1536")
        e.s(f"s_add_u32 s{sT}, s{sT}, 768")
        e.s(f"s_cmp_eq_u32 s{sWwN}, 63")
        e.s(f"s_cselect_b32 s{sT}, 0, s{sT}")
        e.s(f"s_add_u32 s{sLd}, s{sRow0}, s{sT}")
        e.s(f"s_add_u32 s{sLd+1}, s{sLd}, {2*ROW}")
        e.s(f"s_add_u32 s{sLd+2}, s{sRow1}, s{sT}")
        e.s(f"s_add_u32 s{sLd+3}, s{sLd+2}, {2*ROW}")
    fixes = []
    def wrap(sreg, sign):
        n = len(fixes)
        e.s(f"s_cmp_eq_u32 s{sreg}, 63")
        e.s(f"s_cbranch_scc1 L_fix{n}")
        e.label(f"L_fixr{n}")
        fixes.append(sign)
        for i in range(3): e.vw[vG + i] = (e.t - 1, "valu")
    def xloads():
        for it in range(2):
            for i in range(6):
                e.bload(Xr(it, i), 4, vG + i % 3, SX, sLd + 2 * it + (i >= 3), 0, cfg.ldflags)
    next_offsets()
    e.s("s_waitcnt lgkmcnt(0)")
    for srd, p, nb in ((SX, 4, NBYTES), (SO, 12, NBYTES), (SW, 6, 55296), (SWO, 8, 18432), (SR, 10, 1800)):
        e.s(f"s_mov_b32 s{srd}, s{p}")
        e.s(f"s_mov_b32 s{srd+1}, s{p+1}")
        e.s(f"s_mov_b32 s{srd+2}, {nb}")
        e.s(f"s_mov_b32 s{srd+3}, 0x20000")
    RAW = 80
    FR = 128
    e.s(f"s_cmp_ge_u32 s{sWave}, 6")
    e.s("s_cbranch_scc1 L_bias")
    e.s(f"s_mul_i32 s{sT}, s{sWave}, 9216")
    e.s(f"s_add_u32 s{sT+1}, s{sT}, 4096")
    e.s(f"s_add_u32 s{sT+2}, s{sT}, 8192")
    e.s(f"s_mul_i32 s{sT+3}, s{sWave}, 3072")
    for j in range(9):
        e.bload(RAW + 4 * j, 4, vWb, SW, sT + j // 4, (j % 4) * 1024)
    for j in range(3):
        e.bload(RAW + 36 + 4 * j, 4, vWb, SWO, sT + 3, j * 1024)
    if cfg.late_x:
        e.s(f"s_cmp_ge_u32 s{sWave}, 4")
        e.s("s_cbranch_scc1 L_nox0")
    xloads()
    if cfg.late_x:
        e.label("L_nox0")
    aW, aO, aTq, aTo = 180, 181, 182, 183
    e.s(f"s_mul_i32 s{sT+4}, s{sWave}, {SBQ}")
    e.s(f"s_add_u32 s{sT+5}, s{sT+3}, {WOB}")
    e.valu(f"v_add_u32 v{aW}, s{sT+4}, v{vWb}", [aW], [vWb])
    e.valu(f"v_add_u32 v{aO}, s{sT+5}, v{vWb}", [aO], [vWb])
    e.valu(f"v_bfe_u32 v{tA}, v{L}, 2, 2", [tA], [L])
    e.valu(f"v_lshrrev_b32 v{tB}, 5, v{L}", [tB], [L])
    e.valu(f"v_lshl_add_u32 v{tC}, v{tB}, 3, v{tA}", [tC], [tA, tB])
    e.valu(f"v_mul_u32_u24 v{aTq}, 576, v{tC}", [aTq], [tC])
    e.valu(f"v_lshl_add_u32 v{tC}, v{tB}, 2, v{tA}", [tC], [tA, tB])
    e.valu(f"v_mul_u32_u24 v{aTo}, 192, v{tC}", [aTo], [tC])
    e.valu(f"v_bfe_u32 v{tA}, v{L}, 4, 1", [tA], [L])
    e.valu(f"v_lshlrev_b32 v{tA}, 5, v{tA}", [tA], [tA])
    e.valu(f"v_add3_u32 v{aTq}, v{aTq}, v{tA}, s{sT+4}", [aTq], [aTq, tA])
    e.valu(f"v_add3_u32 v{aTo}, v{aTo}, v{tA}, s{sT+5}", [aTo], [aTo, tA])
    e.valu(f"v_and_b32 v{tA}, 3, v{L}", [tA], [L])
    e.valu(f"v_lshl_add_u32 v{aTq}, v{tA}, 3, v{aTq}", [aTq], [aTq, tA])
    e.valu(f"v_and_b32 v{tA}, 1, v{L}", [tA], [L])
    e.valu(f"v_lshl_add_u32 v{aTo}, v{tA}, 4, v{aTo}", [aTo], [aTo, tA])
    e.valu(f"v_bfe_u32 v{tA}, v{L}, 1, 1", [tA], [L])
    e.valu(f"v_lshl_add_u32 v{aTo}, v{tA}, 3, v{aTo}", [aTo], [aTo, tA])
    vm_after = e.vm[:12]
    e.vm = vm_after
    if cfg.late_x:
        e.s(f"s_cmp_ge_u32 s{sWave}, 4")
        e.s("s_cbranch_scc0 L_w12")
        e.s("s_waitcnt vmcnt(0)")
        e.label("L_w12")
    e.s("s_waitcnt vmcnt(12)")
    e.vm = []
    for j in range(9): e.ds_write(aW, RAW + 4 * j, 4, j * 1024)
    for j in range(3): e.ds_write(aO, RAW + 36 + 4 * j, 4, j * 1024)
    for T in range(NT):
        e.ds_read(FR + 4 * T, 2, aTq, colbase[T] * 2, op="ds_read_b64_tr_b16")
        e.ds_read(FR + 4 * T + 2, 2, aTq, colbase[T] * 2 + 4 * 576, op="ds_read_b64_tr_b16")
    for t in range(3):
        e.ds_read(FR + 4 * NT + 4 * t, 2, aTo, 64 * t, op="ds_read_b64_tr_b16")
        e.ds_read(FR + 4 * NT + 4 * t + 2, 2, aTo, 64 * t + 8 * 192, op="ds_read_b64_tr_b16")
    e.s(f"s_mov_b32 s{sT+6}, {f32(CSCALE):#x}")
    for r in range(FR, FR + 12):
        e.valu(f"v_lshlrev_b32 v{tA}, 16, v{r}", [tA], [r])
        e.valu(f"v_and_b32 v{tB}, 0xffff0000, v{r}", [tB], [r])
        e.valu(f"v_mul_f32 v{tA}, s{sT+6}, v{tA}", [tA], [tA])
        e.valu(f"v_mul_f32 v{tB}, s{sT+6}, v{tB}", [tB], [tB])
        e.cvt(r, tA, tB)
    e.wait(lg=0)
    for T in range(NT): e.ds_write(aW, FR + 4 * T, 4, T * 1024)
    for t in range(3): e.ds_write(aO, FR + 4 * NT + 4 * t, 4, t * 1024)
    e.s("s_branch L_pro2")
    e.label("L_bias")
    e.reset()
    bA, bO, bP, bR = 80, 96, 112, 113
    e.s(f"s_sub_u32 s{sT}, s{sWave}, 6")
    e.s(f"s_lshl_b32 s{sT}, s{sT}, 6")
    e.s(f"s_mov_b32 s{sT+6}, {f32(LOG2E):#x}")
    e.s(f"s_mov_b32 s{sT+7}, {f32(MASKV):#x}")
    for k in range(2):
        p, Rr, go, la = 112 + 4 * k, 113 + 4 * k, 114 + 4 * k, 115 + 4 * k
        e.valu(f"v_add_u32 v{p}, s{sT}, v{L}", [p], [L])
        if k: e.valu(f"v_add_u32 v{p}, 128, v{p}", [p], [p])
        e.valu(f"v_mul_u32_u24 v{Rr}, 43691, v{p}", [Rr], [p])
        e.valu(f"v_lshrrev_b32 v{Rr}, 19, v{Rr}", [Rr], [Rr])
        e.valu(f"v_mad_u32_u24 v{go}, v{Rr}, 3, v{p}", [go], [Rr, p])
        e.valu(f"v_lshlrev_b32 v{go}, 3, v{go}", [go], [go])
        e.valu(f"v_mad_u32_u24 v{la}, v{Rr}, 12, v{p}", [la], [Rr, p])
        e.valu(f"v_lshlrev_b32 v{la}, 4, v{la}", [la], [la])
        e.valu(f"v_add_u32 v{la}, {BIAS}, v{la}", [la], [la])
        e.bload(bA + 8 * k, 4, go, SR, None, 0)
        e.bload(bA + 8 * k + 4, 4, go, SR, None, 16)
    if not cfg.late_x:
        xloads()
        e.vm = e.vm[:4] + [set()] * 12
    for k in range(2):
        p, la = 112 + 4 * k, 115 + 4 * k
        if k:
            e.s(f"s_cmp_eq_u32 s{sWave}, 7")
            e.s("s_cbranch_scc1 L_pro2")
            e.valu(f"v_cmp_gt_u32 vcc, 180, v{p}", [], [p], sw=["vcc"])
            e.nop(4)
            e.s("s_mov_b64 exec, vcc")
        for h in range(4):
            for el in range(4):
                src = bA + 8 * k + 2 * (3 - el) + (h >> 1)
                d = bO + el
                if h & 1: e.valu(f"v_and_b32 v{d}, 0xffff0000, v{src}", [d], [src])
                else: e.valu(f"v_lshlrev_b32 v{d}, 16, v{src}", [d], [src])
                e.valu(f"v_mul_f32 v{d}, s{sT+6}, v{d}", [d], [d])
                e.valu(f"v_subrev_f32 v{d+4}, s{sT+7}, v{d}", [d + 4], [d])
            off = (h >> 1) * 5760 + (h & 1) * 192
            e.ds_write(la, bO, 4, off)
            e.ds_write(la, bO + 4, 4, off + BMASK)
            e.wait(lg=0)
    e.s("s_mov_b64 exec, -1")
    e.label("L_pro2")
    e.reset()
    if cfg.late_x:
        e.s(f"s_cmp_lt_u32 s{sWave}, 4")
        e.s("s_cbranch_scc1 L_nox1")
        xloads()
        e.label("L_nox1")
    e.s(f"s_mul_i32 s{sT}, s{sWave}, {STW}")
    e.s(f"s_add_u32 s{sT}, s{sT}, {STAGE}")
    for i in range(3):
        e.valu(f"v_add_u32 v{tA}, {64*i}, v{L}", [tA], [L])
        e.valu(f"v_mul_u32_u24 v{tB}, 43691, v{tA}", [tB], [tA])
        e.valu(f"v_lshrrev_b32 v{tB}, 19, v{tB}", [tB], [tB])
        e.valu(f"v_add_u32 v{tA}, v{tA}, v{tB}", [tA], [tA, tB])
        e.valu(f"v_lshl_add_u32 v{vSl+i}, v{tA}, 4, s{sT}", [vSl + i], [tA])
    e.valu(f"v_and_b32 v{tA}, 31, v{L}", [tA], [L])
    e.valu(f"v_mul_u32_u24 v{tA}, 208, v{tA}", [tA], [tA])
    e.valu(f"v_lshrrev_b32 v{tB}, 5, v{L}", [tB], [L])
    e.valu(f"v_lshl_add_u32 v{tA}, v{tB}, 4, v{tA}", [tA], [tA, tB])
    e.valu(f"v_add_u32 v{vSt}, s{sT}, v{tA}", [vSt], [tA])
    e.valu(f"v_bfe_u32 v{tA}, v{L}, 3, 2", [tA], [L])
    e.valu(f"v_mul_u32_u24 v{tA}, 24, v{tA}", [tA], [tA])
    e.valu(f"v_and_b32 v{tC}, 7, v{L}", [tC], [L])
    e.valu(f"v_add_u32 v{tA}, v{tA}, v{tC}", [tA], [tA, tC])
    e.valu(f"v_lshlrev_b32 v{tB}, 2, v{tB}", [tB], [tB])
    e.valu(f"v_sub_u32 v{tA}, v{tA}, v{tB}", [tA], [tA, tB])
    e.valu(f"v_lshlrev_b32 v{tA}, 4, v{tA}", [tA], [tA])
    e.valu(f"v_add_u32 v{vBb}, {BIAS + 64}, v{tA}", [vBb], [tA])
    e.s("s_waitcnt lgkmcnt(0)")
    for r in range(V0, V0 + 64):
        e.valu(f"v_mov_b32 v{r}, 0x3f803f80", [r])
    e.s("s_barrier")
    e.s("s_waitcnt vmcnt(0)")
    e.s("s_branch L_top")

    e.raw(".p2align 6")
    e.label("L_loop")
    e.s("s_waitcnt vmcnt(12)")
    e.label("L_top")
    e.reset()
    if cfg.prio: e.s("s_setprio 0")
    e.s(f"s_mov_b32 s{sCurE}, s{sNextE}")
    e.s(f"s_mov_b32 s{sCurSlow}, s{sNextSlow}")
    e.s(f"s_mov_b32 s{sWwC}, s{sWwN}")
    e.s(f"s_mov_b64 s[{sSt}:{sSt+1}], s[{sLd}:{sLd+1}]")
    e.s(f"s_mov_b64 s[{sSt+2}:{sSt+3}], s[{sLd+2}:{sLd+3}]")
    WB = [96, 100, 120, 124]
    for it in range(2):
        for i in range(6): e.ds_write(vSl + i % 3, Xr(it, i), 4, 3328 * (i >= 3))
        for s in range(6): e.ds_read(Xr(it, s), 4, vSt, 32 * s)
    e.valu(f"v_mov_b32 v{vB0}, v{vBb}", [vB0], [vBb])
    e.valu(f"v_add_u32 v{vB1}, s{sRowAdj}, v{vBb}", [vB1], [vBb])
    e.s(f"s_cmp_eq_u32 s{sWwC}, 63")
    e.s("s_cbranch_scc1 L_colmask")
    e.label("L_colmaskr")

    chains = [("V", 0), ("V", 1), ("V", 2), ("V", 3), ("K", 0), ("K", 1), ("K", 2), ("Q", 0), ("Q", 1), ("Q", 2)]
    tile_of = {"Q": 0, "K": 3, "V": 6}
    accs = [(T0, T1), (80, 104), (T0, T1), (80, 104), (T0, T1), (80, 104), (T0, T1), (80, 104), (T0, T1), (T0, T1)]
    frags = [(c, s) for c in range(len(chains)) for s in range(6)]
    def wread(n):
        if n < len(frags):
            c, s = frags[n]
            kind, t = chains[c]
            e.ds_read(WB[n % 4], 4, vWb, s * SBQ + (tile_of[kind] + t) * 1024)
    def cvts_of(c):
        kind, t = chains[c]
        out = []
        for it in range(2):
            a = accs[c][it]
            for k in range(8):
                if kind == "V": d = Vr(t, 8 * it + k)
                elif kind == "Q": d = Qr(it, 8 * t + k)
                else:
                    p = 8 * t + k
                    d = Kr(p // 6, it, p % 6)
                out.append((d, a + 2 * k, a + 2 * k + 1))
        return out
    def bias_read(n, q):
        h, it, jt = n >> 2, (n >> 1) & 1, n & 1
        dl = it - jt
        off = (((h >> 1) * 15 + (4 * dl - q + 7)) * 24 + (h & 1) * 12) * 16
        e.ds_read(RING[n % 4] + 4 * q, 4, vB0 if dl == 0 else vB1, off)
    RING = [0, 16, 32, T0]
    OA = T1
    for n in range(3): wread(n)
    pend = []
    for c, (kind, t) in enumerate(chains):
        if cfg.prio and c == 3: e.s("s_setprio 1")
        last = c == len(chains) - 1
        if last:
            for (d, a, b) in pend: e.cvt(d, a, b)
            pend = []
        pk = chains[c - 1][0] if c else None
        for s in range(6):
            n = 6 * c + s
            w = WB[n % 4]
            for it in range(2):
                D = accs[c][it]
                A, B = (Xr(it, s), w) if kind == "V" else (w, Xr(it, s))
                e.mfma(D, A, B, 0 if s == 0 else None)
                if it == 0:
                    wread(n + 3)
                    if last and s == 4:
                        for q in range(4): bias_read(0, q)
                elif s >= 1 and pend:
                    k = 4 if s < 5 else len(pend)
                    grp, pend = pend[:k], pend[k:]
                    if pk == "V": e.s(f"s_mov_b64 exec, s[{sVm}:{sVm+1}]")
                    for (d, a, b) in grp: e.cvt(d, a, b)
                    if pk == "V": e.s("s_mov_b64 exec, -1")
        assert not pend
        pend = cvts_of(c)
    e.s(f"s_cmp_lg_u32 s{sCurSlow}, 0")
    e.s("s_cbranch_scc1 L_slow")
    snap = (e.t, dict(e.mfD))
    if cfg.prio: e.s("s_setprio 2")
    def S_mfma(n, part):
        h, it, jt = n >> 2, (n >> 1) & 1, n & 1
        D = RING[n % 4]
        if part == 0: e.mfma(D, Kr(h, jt, 0), Qr(it, 6 * h), None)
        else: e.mfma(D, Kr(h, jt, 4), Qr(it, 6 * h + 4), None, k8=True)
    def PV_mfma(n, kk):
        h, it, jt = n >> 2, (n >> 1) & 1, n & 1
        e.mfma(OA, Vr(h, 8 * jt + 4 * kk), RING[n % 4] + 4 * kk, 0 if (jt == 0 and kk == 0) else None)
    def norm(u, check=True):
        h, it = u >> 1, u & 1
        ops = []
        r = vT
        ops.append(lambda: e.rcp(r, OA + 12))
        if check:
            if u == 0: ops.append(lambda: e.valu(f"v_mov_b32_e64 v{vChk}, v{OA+12}", [vChk], [OA + 12]))
            else: ops.append(lambda: e.add(vChk, vChk, OA + 12))
        for i in range(12):
            ops.append(lambda i=i: e.mul(OA + i, OA + i, r))
        if check: ops.append(lambda: e.add(vChk, vChk, r))
        for k in range(6):
            ops.append(lambda k=k: e.cvt(Qr(it, 6 * h + k), OA + 2 * k, OA + 2 * k + 1))
        return ops
    for q in range(4): bias_read(1, q)
    S_mfma(0, 0)
    for (d, a, b) in pend[:4]: e.cvt(d, a, b)
    S_mfma(0, 1)
    for (d, a, b) in pend[4:]: e.cvt(d, a, b)
    pend_q2 = pend
    for n in range(17):
        slot = RING[n % 4]
        va = []
        if n < 16:
            for k in range(8):
                va.append(lambda k=k: e.exp(slot + 2 * k, slot + 2 * k))
                va.append(lambda k=k: e.exp(slot + 2 * k + 1, slot + 2 * k + 1))
                if k >= 1: va.append(lambda k=k: e.cvt(slot + k - 1, slot + 2 * k - 2, slot + 2 * k - 1))
            va.append(lambda: e.cvt(slot + 7, slot + 14, slot + 15))
        nrm = norm((n - 1) >> 1) if (n >= 2 and n % 2 == 0) else []
        mf = []
        if n >= 1: mf += [lambda: PV_mfma(n - 1, 0), lambda: PV_mfma(n - 1, 1)]
        if n + 1 < 16: mf += [lambda: S_mfma(n + 1, 0), lambda: S_mfma(n + 1, 1)]
        ds = [lambda q=q: bias_read(n + 2, q) for q in range(4)] if n + 2 < 16 else []
        pos = [0, 5, 10, 15] if len(mf) == 4 else [0, 6]
        dpos = [2, 4, 7, 9]
        seq = va + nrm
        mi = di = 0
        for i in range(len(seq) + 1):
            while mi < len(mf) and (pos[mi] <= i or i == len(va)):
                mf[mi](); mi += 1
            while di < len(ds) and dpos[di] <= i:
                ds[di](); di += 1
            if i < len(seq): seq[i]()
    e.valu(f"v_mov_b32 v{vT+1}, {f32(cfg.thr):#x}", [vT + 1])
    e.valu(f"v_cmp_nlt_f32 vcc, v{vChk}, v{vT+1}", [], [vChk, vT + 1], sw=["vcc"])
    e.s(f"s_lshl_b32 s{sT}, 1, s{sCurE}")
    e.nop(3)
    e.s("s_cmp_lg_u64 vcc, 0")
    e.s(f"s_cselect_b32 s{sT}, s{sT}, 0")
    e.s(f"s_or_b32 s{sRedo}, s{sRedo}, s{sT}")
    e.settle()
    e.label("L_ydo")
    e.reset()
    if cfg.prio: e.s("s_setprio 0")
    vWo = vT + 2
    e.valu(f"v_add_u32 v{vWo}, {WOB}, v{vWb}", [vWo], [vWb])
    YW = [160, 164, 168, 172]
    yfr = [(it, t, s) for it in range(2) for t in range(3) for s in range(6)]
    def yread(n):
        if n < len(yfr):
            it, t, s = yfr[n]
            e.ds_read(YW[n % 4], 4, vWo, s * 3072 + t * 1024)
    for n in range(3): yread(n)
    e.s(f"s_ff1_i32_b32 s{sT}, s{sRedo}")
    e.s(f"s_cmp_lg_u32 s{sPend}, 0")
    e.s(f"s_cselect_b32 s{sNextE}, 1, s{sT}")
    e.s(f"s_cselect_b32 s{sNextSlow}, 0, 1")
    e.s(f"s_mov_b32 s{sPend}, 0")
    e.s(f"s_cmp_lt_i32 s{sNextE}, 0")
    e.s("s_cbranch_scc1 L_nonext")
    e.s(f"s_lshl_b32 s{sT}, s{sNextSlow}, s{sNextE}")
    e.s(f"s_andn2_b32 s{sRedo}, s{sRedo}, s{sT}")
    e.s(f"s_lshl_b32 s{sT}, s{sNextE}, 3")
    e.s(f"s_add_u32 s{sWwN}, s{sWw0}, s{sT}")
    next_offsets()
    wrap(sWwN, +1)
    xloads()
    wrap(sWwN, -1)
    e.label("L_nonext")
    e.vm = []
    YA = [128, 144, T0, T1, 128, 144]
    todo = []
    def ytail(c):
        it, t = c // 3, c % 3
        a = YA[c]
        ops = [lambda k=k: e.cvt(a + k, a + 2 * k, a + 2 * k + 1) for k in range(8)]
        ops.insert(4, lambda: e.ds_write(vSt, a, 4, 64 * t))
        ops.append(lambda: e.ds_write(vSt, a + 4, 4, 64 * t + 32))
        if t == 2:
            ops += [lambda i=i: e.ds_read(Qr(it, 4 * i), 4, vSl + i % 3, 3328 * (i >= 3)) for i in range(6)]
            ops += [lambda i=i: e.bstore(Qr(it, 4 * i), 4, vG + i % 3, SO, sSt + 2 * it + (i >= 3), 0, cfg.stflags) for i in range(6)]
        return ops
    wrap(sWwC, +1)
    for c in range(6):
        it, t = c // 3, c % 3
        for s in range(6):
            n = 6 * c + s
            e.mfma(YA[c], YW[n % 4], Qr(it, 4 * s), 0 if s == 0 else None)
            yread(n + 3)
            if s >= 1 or c >= 4:
                for _ in range(2):
                    if todo: todo.pop(0)()
        todo += ytail(c)
    for f in todo: f()
    wrap(sWwC, -1)
    e.s(f"s_cmp_lt_i32 s{sNextE}, 0")
    e.s("s_cbranch_scc0 L_loop")
    e.label("L_end")
    e.s("s_endpgm")

    for n, sign in enumerate(fixes):
        e.label(f"L_fix{n}")
        a, b = (97536, -768) if sign > 0 else (-97536, 768)
        for i, (lo, hi) in enumerate(((0, 0xffff0000), (0xffffffff, 0), (0xffff0000, 0xffffffff))):
            e.s(f"s_mov_b32 exec_lo, {lo:#x}")
            e.s(f"s_mov_b32 exec_hi, {hi:#x}")
            e.raw(f"    v_add_u32 v{vG+i}, {b & 0xffffffff:#x}, v{vG+i}")
            e.s("s_not_b64 exec, exec")
            e.raw(f"    v_add_u32 v{vG+i}, {a & 0xffffffff:#x}, v{vG+i}")
        e.s("s_mov_b64 exec, -1")
        e.s(f"s_branch L_fixr{n}")
    e.label("L_colmask")
    e.s("s_mov_b32 exec_lo, 0xf0f0f0f0")
    e.s("s_mov_b32 exec_hi, 0x0f0f0f0f")
    e.raw(f"    v_add_u32 v{vB0}, {BMASK}, v{vBb}")
    e.raw(f"    v_add_u32 v{vB1}, {BMASK}, v{vBb}")
    e.s("s_mov_b64 exec, -1")
    e.s("s_branch L_colmaskr")
    e.label("L_slow")
    e.reset()
    e.s("s_waitcnt lgkmcnt(0)")
    e.nop(16)
    for (d, a, b) in pend_q2: e.cvt(d, a, b)
    RING = [0, 16, 0, 16]
    m, m2 = vT + 1, vT + 2
    for u in range(8):
        for jt in range(2):
            for q in range(4): bias_read(2 * u + jt, q)
        for jt in range(2):
            S_mfma(2 * u + jt, 0); S_mfma(2 * u + jt, 1)
        e.valu(f"v_max_f32 v{m}, v0, v1", [m], [0, 1])
        for k in range(1, 16):
            e.valu(f"v_max3_f32 v{m}, v{m}, v{2*k}, v{2*k+1}", [m], [m, 2 * k, 2 * k + 1])
        e.valu(f"v_mov_b32 v{m2}, v{m}", [m2], [m])
        e.valu(f"v_permlane32_swap_b32 v{m}, v{m2}", [m, m2], [m, m2], perm=True)
        e.nop(2)
        e.valu(f"v_max_f32 v{m}, v{m}, v{m2}", [m], [m, m2])
        for k in range(32):
            e.valu(f"v_sub_f32 v{k}, v{k}, v{m}", [k], [k, m])
        for k in range(32): e.exp(k, k)
        for jt in range(2):
            for k in range(8): e.cvt(16 * jt + k, 16 * jt + 2 * k, 16 * jt + 2 * k + 1)
        for jt in range(2):
            PV_mfma(2 * u + jt, 0); PV_mfma(2 * u + jt, 1)
        for f in norm(u, check=False): f()
    e.settle()
    e.s("s_branch L_ydo")
    e.raw('.section .rodata,"a"')
    e.raw(".p2align 6")
    e.raw(f".amdhsa_kernel {NAME}_kernel")
    e.raw("  .amdhsa_next_free_vgpr 256")
    e.raw("  .amdhsa_next_free_sgpr 96")
    e.raw("  .amdhsa_accum_offset 256")
    e.raw("  .amdhsa_group_segment_fixed_size 0")
    e.raw("  .amdhsa_kernarg_size 72")
    e.raw("  .amdhsa_user_sgpr_count 2")
    e.raw("  .amdhsa_user_sgpr_kernarg_segment_ptr 1")
    e.raw("  .amdhsa_system_sgpr_workgroup_id_x 1")
    e.raw(".end_amdhsa_kernel")
    return e

if __name__ == "__main__":
    cfg = Cfg()
    out = "cdna_kernels/" + NAME + ".s"
    for a in sys.argv[1:]:
        k, v = a.split("=", 1)
        if k == "out": out = v
        else:
            old = getattr(cfg, k)
            setattr(cfg, k, (v in ("1", "True")) if isinstance(old, bool) else type(old)(v))
    e = gen(cfg)
    open(out, "w").write(e.text())
    print(out, e.nins, "instrs", {k: v for k, v in sorted(e.stats.items(), key=lambda x: -x[1])[:14]})
```

```python
import re

def vr(a, n=1):
    return f"v{a}" if n == 1 else f"v[{a}:{a+n-1}]"
def sr(a, n=1):
    return f"s{a}" if n == 1 else f"s[{a}:{a+n-1}]"
def R(a, n=1):
    return list(range(a, a + n))

TRANS = ("v_exp_f32", "v_rcp_f32", "v_log_f32", "v_rsq_f32", "v_sqrt_f32")

class Em:
    def __init__(self):
        self.out = []
        self.reset()
        self.nins = 0
        self.sfx = "_e64"
        self.stats = {}
    def reset(self):
        self.t = 0
        self.vw = {}
        self.mfD = {}
        self.mfC = {}
        self.stw = {}
        self.sw = {}
        self.lg = []
        self.vm = []
    def raw(self, s):
        self.out.append(s)
    def comment(self, s):
        self.out.append("    ; " + s)
    def label(self, s):
        self.out.append(s + ":")
    def _emit(self, s, states=1):
        self.out.append("    " + s)
        self.t += states
        self.nins += 1
        k = s.split()[0]
        self.stats[k] = self.stats.get(k, 0) + 1
    def nop(self, n):
        while n > 0:
            k = min(n, 16)
            self._emit(f"s_nop {k-1}", k)
            n -= k
    def need(self, t_prod, dist):
        have = self.t - t_prod - 1
        if have < dist:
            self.nop(dist - have)
    def _waits(self, regs):
        regs = set(regs)
        lg = None
        for i, d in enumerate(self.lg):
            if d & regs: lg = i
        vm = None
        for i, d in enumerate(self.vm):
            if d & regs: vm = i
        parts = []
        if vm is not None:
            n = len(self.vm) - 1 - vm
            parts.append(f"vmcnt({n})"); self.vm = self.vm[vm+1:]
        if lg is not None:
            n = len(self.lg) - 1 - lg
            parts.append(f"lgkmcnt({n})"); self.lg = self.lg[lg+1:]
        if parts:
            self._emit("s_waitcnt " + " ".join(parts))
    def wait(self, vm=None, lg=None):
        parts = []
        if vm is not None:
            parts.append(f"vmcnt({vm})"); self.vm = self.vm[len(self.vm)-vm:] if vm else []
        if lg is not None:
            parts.append(f"lgkmcnt({lg})"); self.lg = self.lg[len(self.lg)-lg:] if lg else []
        self._emit("s_waitcnt " + " ".join(parts))
    def _mf_dep(self, regs, dist=12):
        for r in regs:
            if r in self.mfD: self.need(self.mfD[r][0], dist)
    def valu(self, text, w=(), r=(), sr_=(), sw=(), perm=False, rl=False):
        op = text.split()[0]
        base = op.replace("_e64", "").replace("_e32", "")
        trans = base in TRANS
        self._waits(list(w) + list(r))
        self._mf_dep(list(w) + list(r))
        for x in w:
            if x in self.mfC: self.need(self.mfC[x], 7)
            if x in self.stw: self.need(self.stw[x], 2)
        for x in r:
            if x in self.vw:
                tp, k = self.vw[x]
                if k == "trans" and not trans: self.need(tp, 1)
                if perm: self.need(tp, 2)
                if rl: self.need(tp, 1)
        if perm:
            for x in w:
                if x in self.vw: self.need(self.vw[x][0], 2)
        for x in sr_:
            if x in self.sw: self.need(self.sw[x], 2)
        t = self.t
        self._emit(text)
        for x in w:
            self.vw[x] = (t, "trans" if trans else "valu"); self.mfD.pop(x, None)
        for x in sw: self.sw[x] = t
    def mfma(self, D, A, B, C=None, k8=False):
        n = 2 if k8 else 4
        a, b, d = R(A, n), R(B, n), R(D, 16)
        other = isinstance(C, tuple)
        cin = d if C is None else (R(C[1], 16) if other else [])
        self._waits(a + b + d + cin)
        if other: self._mf_dep(cin, 10)
        for x in a + b + cin:
            if x in self.vw: self.need(self.vw[x][0], 2)
        self._mf_dep(a + b, 12)
        for x in d:
            if x in self.mfD:
                tp, base = self.mfD[x]
                if C is None and base == D: pass
                elif C is None: self.need(tp, 10)
                else: self.need(tp, 10)
            if x in self.stw: self.need(self.stw[x], 2)
        name = "v_mfma_f32_32x32x8_bf16" if k8 else "v_mfma_f32_32x32x16_bf16"
        cs = vr(D, 16) if C is None else (vr(C[1], 16) if other else "0")
        t = self.t
        self._emit(f"{name} {vr(D,16)}, {vr(A,n)}, {vr(B,n)}, {cs}")
        for x in d:
            self.mfD[x] = (t, D); self.vw.pop(x, None)
        for x in cin: self.mfC[x] = t
    def _lds_room(self):
        if len(self.lg) >= 15:
            self.wait(lg=13)
    def ds_read(self, D, n, addr, off=0, op=None):
        op = op or {1: "ds_read_b32", 2: "ds_read_b64", 4: "ds_read_b128"}[n]
        d = R(D, n)
        self._waits(d + [addr]); self._mf_dep(d + [addr]); self._lds_room()
        for x in d:
            if x in self.stw: self.need(self.stw[x], 2)
        assert 0 <= off < 65536, off
        self._emit(f"{op} {vr(D,n)}, {vr(addr)} offset:{off}")
        self.lg.append(set(d))
        for x in d:
            self.vw.pop(x, None); self.mfD.pop(x, None)
    def ds_write(self, addr, S, n, off=0):
        op = {1: "ds_write_b32", 2: "ds_write_b64", 4: "ds_write_b128"}[n]
        s = R(S, n)
        self._waits(s + [addr]); self._mf_dep(s + [addr]); self._lds_room()
        assert 0 <= off < 65536, off
        self._emit(f"{op} {vr(addr)}, {vr(S,n)} offset:{off}")
        self.lg.append(set())
    def _sdep(self, srd, soff):
        for x in R(srd, 4) + ([soff] if isinstance(soff, int) else []):
            if x in self.sw: self.need(self.sw[x], 5)
    def bload(self, D, n, voff, srd, soff=None, off=0, flags=""):
        op = {1: "buffer_load_dword", 2: "buffer_load_dwordx2", 4: "buffer_load_dwordx4"}[n]
        d = R(D, n)
        self._waits(d + [voff]); self._mf_dep(d + [voff]); self._sdep(srd, soff)
        for x in d:
            if x in self.stw: self.need(self.stw[x], 2)
        assert 0 <= off < 4096 and len(self.vm) < 60
        so = "0" if soff is None else sr(soff)
        self._emit(f"{op} {vr(D,n)}, {vr(voff)}, {sr(srd,4)}, {so} offen offset:{off} {flags}".rstrip())
        self.vm.append(set(d))
        for x in d:
            self.vw.pop(x, None); self.mfD.pop(x, None)
    def bload_lds(self, voff, srd, soff, flags=""):
        self._mf_dep([voff]); self._sdep(srd, soff)
        so = "0" if soff is None else sr(soff)
        self._emit(f"buffer_load_dwordx4 {vr(voff)}, {sr(srd,4)}, {so} offen {flags} lds".replace("  ", " "))
        self.vm.append(set())
    def bstore(self, S, n, voff, srd, soff=None, off=0, flags=""):
        op = {1: "buffer_store_dword", 2: "buffer_store_dwordx2", 4: "buffer_store_dwordx4"}[n]
        s = R(S, n)
        self._waits(s + [voff]); self._mf_dep(s + [voff]); self._sdep(srd, soff)
        assert 0 <= off < 4096 and len(self.vm) < 60
        so = "0" if soff is None else sr(soff)
        t = self.t
        self._emit(f"{op} {vr(S,n)}, {vr(voff)}, {sr(srd,4)}, {so} offen offset:{off} {flags}".rstrip())
        self.vm.append(set())
        if n >= 3:
            for x in s: self.stw[x] = t
    def s(self, text):
        self._emit(text)
    def settle(self):
        worst = 0
        for x, (tp, b) in self.mfD.items(): worst = max(worst, 12 - (self.t - tp - 1))
        for x, (tp, k) in self.vw.items(): worst = max(worst, 2 - (self.t - tp - 1))
        for x, tp in self.stw.items(): worst = max(worst, 2 - (self.t - tp - 1))
        for x, tp in self.sw.items(): worst = max(worst, 5 - (self.t - tp - 1))
        if worst > 0: self.nop(worst)
    def cvt(self, d, a, b): self.valu(f"v_cvt_pk_bf16_f32 v{d}, v{a}, v{b}", [d], [a, b])
    def exp(self, d, a): self.valu(f"v_exp_f32{self.sfx} v{d}, v{a}", [d], [a])
    def rcp(self, d, a): self.valu(f"v_rcp_f32{self.sfx} v{d}, v{a}", [d], [a])
    def mul(self, d, a, b): self.valu(f"v_mul_f32{self.sfx} v{d}, v{a}, v{b}", [d], [a, b])
    def add(self, d, a, b): self.valu(f"v_add_f32{self.sfx} v{d}, v{a}, v{b}", [d], [a, b])
    def text(self): return "\n".join(self.out) + "\n"
```

```python
import sys, math, struct
from emit import *

NAME = "standalone__window_attn_swin__vision"
def f32(x): return struct.unpack("<I", struct.pack("<f", x))[0]
LOG2E = 1.4426950408889634
CSCALE = LOG2E / math.sqrt(24.0)
MASKV = 100.0 * LOG2E
ROW = 98304
NBYTES = 50331648

class Cfg:
    ldflags = "nt"
    stflags = "sc0 sc1 nt"
    xmode = "lds"
    prio = True
    p1chain = 3
    thr = 2.0**30
    stamps = False
    diag = True
    youngx = "bar"
    boost = True
    gsz = 4
    codepf = True
    spin = 0
    gspin = False
    itm0 = True
    touch = False
    yx = "postB"
    x1 = 2
    xfirst = False
    yprio = 1
    e32 = True
    rush = 0
    exp_nox = False
    exp_noy = False
    exp_nobias = False
    exp_nost = 0
    lowatt = 0
    xdma = False
    d0 = 4
    ypre = True
    rot = False
    stflags0 = "sc0 sc1 nt"
    dir0 = 0
    dflags = ""
    exp_ka = False
    sgapY = 1
    sgapD = 3
    nsingle = 6
    sord = (4, 5, 0, 1, 2, 3)
    xmix = False
    xmixci = 7
    otouch = -1
    xlate = 1
    stflagsL = "sc0 sc1 nt"
    flagB = False
    exp_now = False
    exp_nomul = False
    exp_noexp = False
    exp_nocvtp = False
    mord = 0
    mgap = 5
    deep = 3
    midc = 2
    piece = False
    exp_nok8 = False
    exp_nod = 0
    exp_nocv = False
    xiny = False
    mile = -1
    milew = 0
    solo = False

def gen(cfg):
    e = Em()
    e.sfx = "_e32" if cfg.e32 else "_e64"
    X0, T0, T1, Q0, K0, V0 = 0, 48, 64, 80, 128, 176
    vWb, vB0, vB1, vSt, vSl, vG, vChk, vX, vRc, vL, vWo = 240, 241, 242, 243, 244, 247, 250, 251, 252, 253, 254
    SX, SO, SW, SWO, SR = 16, 20, 24, 28, 32
    sWave, sWh, sWw0, sWw1 = 36, 37, 38, 39
    sOff = 44
    sVm = 52
    sRowAdj, sRedo, sCurE, sRow0, sRow1, sWwC = 62, 63, 64, 65, 66, 67
    sT = 72
    sStage = 68
    NT = 9
    SBQ = NT * 1024
    WOB = 6 * SBQ
    BIAS = WOB + 6 * 3072
    BMASK = 11520
    STAGE = BIAS + 2 * BMASK
    STW = 6144
    FLAG = STAGE + 8 * STW
    LDS = FLAG + 64
    direct = False
    ldflags = "" if direct else cfg.ldflags
    def Xr(it, s): return X0 + 24 * it + 4 * s
    def Qr(it, p): return Q0 + 24 * it + p
    def Kr(h, jt, p): return K0 + 12 * h + 6 * ((1 - jt) if cfg.diag else jt) + p
    def Vr(h, p): return V0 + 16 * h + p
    V = e.valu

    hdr = open("cdna_kernels/" + NAME + ".s.ref").read().split("; Override launch")[0]
    e.raw(hdr.rstrip())
    e.raw(f"; @launch grid=(256,1,1) block=(512,1,1) lds={LDS}")
    e.raw('.amdgcn_target "amdgcn-amd-amdhsa--gfx950"')
    e.raw(".text")
    e.raw(f".globl {NAME}_kernel")
    e.raw(".p2align 8")
    e.raw(f".type {NAME}_kernel,@function")
    e.label(f"{NAME}_kernel")
    def stamp(idx):
        if cfg.mile == idx:
            e.s("s_memrealtime s[92:93]")
            e.wait(lg=0)
        if not cfg.stamps: return
        e.s("s_memtime s[90:91]")
        e.s("s_memrealtime s[94:95]")
        e.wait(lg=0)
        e.raw(f"    v_writelane_b32 v255, s90, {idx}")
        e.raw(f"    v_writelane_b32 v255, s94, {idx + 32}")
    cur = [0]
    def prio(p):
        cur[0] = p
        if cfg.prio: e.s(f"s_setprio {p}")
    nob = [False]
    def boosted(fs):
        b = cfg.prio and cfg.boost and not nob[0]
        if b: e.s("s_setprio 3")
        for f in fs: f()
        if b: e.s(f"s_setprio {cur[0]}")
    nrush = [0]
    def rushprio(p):
        nrush[0] += 1
        e.s(f"s_setprio {p}")
        e.s(f"s_cmp_lt_u32 s{sWave}, 4")
        e.s(f"s_cbranch_scc1 L_rush{nrush[0]}")
        e.s("s_setprio 3")
        e.label(f"L_rush{nrush[0]}")

    tA, tB, tC = 252, 254, 250
    vLin, vS4, vS5 = vSl, vSl + 1, vSl + 2
    def lane_consts():
        e.s(f"s_mov_b32 s{sT+1}, {ROW - 8 * 192}")
        for i in range(3):
            d = vG + i
            V(f"v_add_u32 v{tA}, {64*i}, v{vL}", [tA], [vL])
            V(f"v_mul_u32_u24 v{tB}, 43691, v{tA}", [tB], [tA])
            V(f"v_lshrrev_b32 v{tB}, 19, v{tB}", [tB], [tB])
            V(f"v_lshrrev_b32 v{tC}, 2, v{tB}", [tC], [tB])
            V(f"v_sub_u32 v{tC}, v{tC}, v{tB}", [tC], [tC, tB])
            V(f"v_and_b32 v{tC}, 3, v{tC}", [tC], [tC])
            V(f"v_sub_u32 v{d}, v{tA}, v{tC}", [d], [tA, tC])
            V(f"v_mul_u32_u24 v{tC}, 12, v{tB}", [tC], [tB])
            V(f"v_cmp_lt_i32 vcc, v{d}, v{tC}", [], [d, tC], sw=["vcc"])
            V(f"v_add_u32 v{tA}, 12, v{d}", [tA], [d])
            V(f"v_lshrrev_b32 v{tB}, 3, v{tB}", [tB], [tB])
            V(f"v_cndmask_b32 v{d}, v{d}, v{tA}, vcc", [d], [d, tA], sr_=["vcc"])
            V(f"v_lshlrev_b32 v{d}, 4, v{d}", [d], [d])
            V(f"v_mad_u32_u24 v{d}, v{tB}, s{sT+1}, v{d}", [d], [tB, d])
    def lane_consts2():
        e.s(f"s_mul_i32 s{sStage}, s{sWave}, {STW}")
        e.s(f"s_add_u32 s{sStage}, s{sStage}, {STAGE}")
        V(f"v_add_u32 v{vLin}, s{sStage}, v{vWb}", [vLin], [vWb])
        V(f"v_and_b32 v{tA}, 31, v{vL}", [tA], [vL])
        V(f"v_lshrrev_b32 v{tB}, 2, v{tA}", [tB], [tA])
        V(f"v_sub_u32 v{tB}, v{tB}, v{tA}", [tB], [tB, tA])
        V(f"v_and_b32 v{tB}, 3, v{tB}", [tB], [tB])
        V(f"v_lshrrev_b32 v{tC}, 5, v{vL}", [tC], [vL])
        V(f"v_add_u32 v{tB}, v{tB}, v{tC}", [tB], [tB, tC])
        V(f"v_mul_u32_u24 v{tA}, 192, v{tA}", [tA], [tA])
        V(f"v_lshl_add_u32 v{tA}, v{tB}, 4, v{tA}", [tA], [tA, tB])
        V(f"v_add_u32 v{vSt}, s{sStage}, v{tA}", [vSt], [tA])
        for d, j in ((vS4, 4), (vS5, 5)):
            V(f"v_cmp_le_u32 vcc, {12 - 2 * j}, v{tB}", [], [tB], sw=["vcc"])
            V(f"v_add_u32 v{d}, {32 * j}, v{vSt}", [d], [vSt])
            V(f"v_subrev_u32 v{tA}, 192, v{d}", [tA], [d])
            V(f"v_cndmask_b32 v{d}, v{d}, v{tA}, vcc", [d], [d, tA], sr_=["vcc"])
    def tok(j):
        return (vSt, 32 * j) if j < 4 else ((vS4, 0) if j == 4 else (vS5, 0))
    def bias_base():
        V(f"v_bfe_u32 v{tA}, v{vL}, 3, 2", [tA], [vL])
        V(f"v_mul_u32_u24 v{tA}, 24, v{tA}", [tA], [tA])
        V(f"v_and_b32 v{tC}, 7, v{vL}", [tC], [vL])
        V(f"v_add_u32 v{tA}, v{tA}, v{tC}", [tA], [tA, tC])
        V(f"v_lshrrev_b32 v{tB}, 5, v{vL}", [tB], [vL])
        V(f"v_lshlrev_b32 v{tB}, 2, v{tB}", [tB], [tB])
        V(f"v_sub_u32 v{tA}, v{tA}, v{tB}", [tA], [tA, tB])
        V(f"v_lshlrev_b32 v{tA}, 4, v{tA}", [tA], [tA])
        V(f"v_add_u32 v{vB0}, {BIAS + 64}, v{tA}", [vB0], [tA])
        V(f"v_add_u32 v{vB1}, s{sRowAdj}, v{vB0}", [vB1], [vB0])
    def offsets(dst, sWw):
        e.s(f"s_mul_i32 s{sT}, s{sWw}, 1536")
        e.s(f"s_add_u32 s{sT}, s{sT}, 768")
        e.s(f"s_cmp_eq_u32 s{sWw}, 63")
        e.s(f"s_cselect_b32 s{sT}, 0, s{sT}")
        e.s(f"s_add_u32 s{dst}, s{sRow0}, s{sT}")
        e.s(f"s_add_u32 s{dst+1}, s{dst}, {2*ROW}")
        e.s(f"s_add_u32 s{dst+2}, s{sRow1}, s{sT}")
        e.s(f"s_add_u32 s{dst+3}, s{dst+2}, {2*ROW}")
    def xaddr(sWw, t1):
        e.s(f"s_lshl_b32 s{sT}, s{sWw}, 3")
        e.s(f"s_add_u32 s{sT}, s{sT}, 4")
        e.s(f"s_mov_b32 s{sT+1}, {ROW}")
        V(f"v_and_b32 v{vX}, 7, v{vL}", [vX], [vL])
        V(f"v_add_u32 v{vX}, s{sT}, v{vX}", [vX], [vX])
        V(f"v_and_b32 v{vX}, 511, v{vX}", [vX], [vX])
        V(f"v_mul_u32_u24 v{vX}, 192, v{vX}", [vX], [vX])
        V(f"v_bfe_u32 v{t1}, v{vL}, 3, 2", [t1], [vL])
        V(f"v_mad_u32_u24 v{vX}, v{t1}, s{sT+1}, v{vX}", [vX], [t1, vX])
        V(f"v_lshrrev_b32 v{t1}, 5, v{vL}", [t1], [vL])
        V(f"v_lshl_add_u32 v{vX}, v{t1}, 4, v{vX}", [vX], [t1, vX])
    ool = []
    def rare(sreg, kind):
        n = len(ool)
        e.s(f"s_cmp_eq_u32 s{sreg}, 63")
        e.s(f"s_cbranch_scc1 L_ool{n}")
        e.label(f"L_oolr{n}")
        ool.append(kind)
    first = [True]
    def xload(k, so):
        it, i = k // 6, k % 6
        if first[0] and it < cfg.dir0:
            e.bload(Xr(it, i), 4, vX, SX, sRow1 if it else sRow0, 32 * i, cfg.dflags)
            return
        if direct: e.bload(Xr(it, i), 4, vX, SX, sRow1 if it else sRow0, 32 * i, "")
        else: e.bload(Xr(it, i), 4, vG + i % 3, SX, so + 2 * it + (i >= 3), 0, ldflags)
    def xstage(it):
        if first[0] and it < cfg.dir0: return []
        ops = [lambda i=i: e.ds_write(vLin, Xr(it, i), 4, 1024 * i) for i in range(6)]
        ops += [lambda s=s: e.ds_read(Xr(it, s), 4, *tok(s)) for s in range(6)]
        return ops
    def xdma(it, so):
        ops = []
        def one(i):
            e.s(f"s_add_u32 m0, s{sStage}, {1024 * i}")
            e.nop(1)
            e.bload_lds(vG + i % 3, SX, so + 2 * it + (i >= 3), ldflags)
            e.vm[-1] = {f"stage{it}"}
        return [lambda i=i: one(i) for i in range(6)]
    def xread(it):
        def one(s):
            e._waits([f"stage{it}"])
            e.ds_read(Xr(it, s), 4, *tok(s))
        return [lambda s=s: one(s) for s in range(6)]

    e.s("s_cmp_ge_u32 s2, 256")
    e.s("s_cbranch_scc1 L_end")
    e.s("s_load_dwordx8 s[4:11], s[0:1], 0")
    e.s("s_load_dwordx2 s[12:13], s[0:1], 48")
    if cfg.spin:
        e.s("s_memrealtime s[88:89]")
    if cfg.codepf:
        e.s("s_getpc_b64 s[40:41]")
        e.label("L_pc")
        e.raw("    v_lshlrev_b32 v1, 7, v0")
        e.raw("    v_min_u32 v1, L_end-L_pc, v1")
        e.raw("    global_load_dword v239, v1, s[40:41]")
    if cfg.stamps:
        e.s("s_load_dwordx2 s[14:15], s[0:1], 64")
        e.s("s_memtime s[86:87]")
        e.s("s_memrealtime s[88:89]")
        e.raw("    v_mov_b32 v255, 0")
        if cfg.exp_ka:
            stamp(6)
    V(f"v_lshrrev_b32 v{tA}, 6, v0", [tA], [0])
    V(f"v_and_b32 v{vL}, 63, v0", [vL], [0])
    V(f"v_readfirstlane_b32 s{sWave}, v{tA}", [], [tA], sw=[sWave], rl=True)
    V(f"v_lshlrev_b32 v{vWb}, 4, v{vL}", [vWb], [vL])
    e.s(f"s_lshr_b32 s{sWh}, s2, 2")
    e.s(f"s_and_b32 s{sWw0}, s2, 3")
    e.s(f"s_lshl_b32 s{sWw0}, s{sWw0}, 4")
    e.s(f"s_lshl_b32 s{sT}, s{sWh}, 3")
    e.s(f"s_add_u32 s{sRow0}, s{sT}, 4")
    e.s(f"s_mul_i32 s{sRow0}, s{sRow0}, {ROW}")
    if cfg.rot:
        e.s(f"s_and_b32 s{sT+1}, s2, 3")
        e.s(f"s_add_u32 s{sT+2}, s{sWh}, s{sT+1}")
        e.s(f"s_cmp_eq_u32 s{sT+1}, 3")
        e.s(f"s_cselect_b32 s{sT+1}, 1, 3")
        e.s(f"s_and_b32 s{sT+2}, s{sT+2}, s{sT+1}")
        e.s(f"s_lshl_b32 s{sT+2}, s{sT+2}, 2")
        e.s(f"s_add_u32 s{sT+2}, s{sT+2}, s{sWave}")
        e.s(f"s_add_u32 s{sT+1}, s{sT+2}, 8")
        e.s(f"s_and_b32 s{sT+2}, s{sT+2}, 15")
        e.s(f"s_and_b32 s{sT+1}, s{sT+1}, 15")
        e.s(f"s_add_u32 s{sWw1}, s{sWw0}, s{sT+1}")
        e.s(f"s_add_u32 s{sWw0}, s{sWw0}, s{sT+2}")
    else:
        e.s(f"s_add_u32 s{sWw0}, s{sWw0}, s{sWave}")
    gU = 96
    V(f"v_add_u32 v{gU}, 1024, v{vWb}", [gU], [vWb])
    V(f"v_add_u32 v{gU+1}, {ROW-512}, v{vWb}", [gU + 1], [vWb])
    V(f"v_cmp_gt_u32 vcc, 32, v{vL}", [], [vL], sw=["vcc"])
    e.s(f"s_mul_i32 s{sOff}, s{sWw0}, 1536")
    e.s(f"s_add_u32 s{sOff}, s{sOff}, s{sRow0}")
    e.s(f"s_add_u32 s{sOff}, s{sOff}, 768")
    V(f"v_cndmask_b32 v{gU}, v{gU+1}, v{gU}, vcc", [gU], [gU, gU + 1], sr_=["vcc"])
    e.s(f"s_add_u32 s{sOff+1}, s{sOff}, {2*ROW}")
    e.s(f"s_add_u32 s{sOff+2}, s{sOff}, {ROW+512}")
    e.s(f"s_add_u32 s{sOff+3}, s{sOff+1}, {ROW+512}")
    gV = 92
    bA, bP, bR, bG, bL = 80, 88, 89, 90, 91
    for j in range(3):
        V(f"v_add_u32 v{tA}, {64*j}, v{vL}", [tA], [vL])
        V(f"v_mul_u32_u24 v{tB}, 43691, v{tA}", [tB], [tA])
        V(f"v_lshrrev_b32 v{tC}, 19, v{tB}", [tC], [tB])
        V(f"v_mul_u32_u24 v{tC}, 384, v{tC}", [tC], [tC])
        V(f"v_lshl_add_u32 v{gV+j}, v{tA}, 4, v{tC}", [gV + j], [tA, tC])
    V(f"v_and_b32 v{bP}, 0xff, v0", [bP], [0])
    V(f"v_mul_u32_u24 v{bR}, 43691, v{bP}", [bR], [bP])
    V(f"v_lshrrev_b32 v{bR}, 19, v{bR}", [bR], [bR])
    V(f"v_mad_u32_u24 v{bG}, v{bR}, 3, v{bP}", [bG], [bR, bP])
    V(f"v_lshlrev_b32 v{bG}, 3, v{bG}", [bG], [bG])
    sG, sL, sKA, sKB = sT + 4, sT + 5, sT + 9, sT + 10
    e.s(f"s_mul_i32 s{sG}, s{sWave}, 9216")
    e.s(f"s_sub_u32 s{sT+1}, s{sWave}, 6")
    e.s(f"s_mul_i32 s{sT+1}, s{sT+1}, {3*9216}")
    e.s(f"s_add_u32 s{sL}, s{sG}, 6144")
    e.s(f"s_add_u32 s{sG}, s{sG}, 384")
    e.s(f"s_add_u32 s{sT+2}, s{sT+1}, 3072")
    e.s(f"s_add_u32 s{sT+1}, s{sT+1}, 192")
    e.s(f"s_cmp_ge_u32 s{sWave}, 6")
    e.s(f"s_cselect_b32 s{sG}, s{sT+1}, s{sG}")
    e.s(f"s_cselect_b32 s{sL}, s{sT+2}, s{sL}")
    for r, nb in ((SW, 55296), (SR, 1800), (SX, NBYTES)):
        e.s(f"s_mov_b32 s{r+2}, {nb}")
        e.s(f"s_mov_b32 s{r+3}, 0x20000")
    e.s(f"s_mov_b32 m0, s{sL}")
    if cfg.exp_ka: stamp(7)
    e.s("s_waitcnt lgkmcnt(0)")
    stamp(13)
    e.s(f"s_mov_b64 s[{SW}:{SW+1}], s[6:7]")
    e.s(f"s_mov_b64 s[{SX}:{SX+1}], s[4:5]")
    e.s(f"s_mov_b64 s[{SR}:{SR+1}], s[10:11]")
    def blk_dma(sg, last_step=None):
        for j in range(3):
            e.bload_lds(gV + j, SW, sg)
            if j < 2:
                e.s("s_add_u32 m0, m0, 1024")
                e.nop(1)
    if cfg.xfirst:
        e.s(f"s_cmp_ge_u32 s{sWave}, 4")
        e.s("s_cbranch_scc1 L_y0")
        for k in range(6): xload(k, sOff)
        e.label("L_y0")
    blk_dma(sG)
    e.s(f"s_cmp_ge_u32 s{sWave}, 4")
    e.s("s_cbranch_scc1 L_y1")
    e.bload(bA, 4, bG, SR, None, 0)
    e.bload(bA + 4, 4, bG, SR, None, 16)
    for i in range(6):
        e.bload(Xr(0, i), 4, gU if i % 3 == 1 else vWb, SX, sOff + (i >= 3) + (2 if i % 3 == 2 else 0), 0, ldflags)
    stamp(4)
    e.s("s_branch L_iss")
    e.label("L_y1")
    e.s(f"s_cmp_lt_u32 s{sWave}, 6")
    e.s("s_cbranch_scc1 L_iss")
    for i in range(2):
        e.s(f"s_add_u32 m0, m0, {9216 - 2048}")
        e.s(f"s_add_u32 s{sG}, s{sG}, 9216")
        blk_dma(sG)
    e.label("L_iss")
    e.reset()
    stamp(5)
    for r, p, nb in ((SWO, 8, 18432), (SO, 12, NBYTES)):
        e.s(f"s_mov_b64 s[{r}:{r+1}], s[{p}:{p+1}]")
        e.s(f"s_mov_b32 s{r+2}, {nb}")
        e.s(f"s_mov_b32 s{r+3}, 0x20000")
    V(f"v_mad_u32_u24 v{bL}, v{bR}, 12, v{bP}", [bL], [bR, bP])
    V(f"v_lshlrev_b32 v{bL}, 4, v{bL}", [bL], [bL])
    V(f"v_add_u32 v{bL}, {BIAS}, v{bL}", [bL], [bL])
    e.s(f"s_add_u32 s{sWw1}, s{sWw0}, 8")
    e.s(f"s_lshl_b32 s{sRow1}, s{sWh}, 3")
    e.s(f"s_add_u32 s{sRow1}, s{sRow1}, 8")
    e.s(f"s_and_b32 s{sRow1}, s{sRow1}, 511")
    e.s(f"s_mul_i32 s{sRow1}, s{sRow1}, {ROW}")
    offsets(sOff, sWw0)
    offsets(sOff + 4, sWw1)
    lane_consts()
    e.s(f"s_cmp_eq_u32 s{sWh}, 63")
    e.s(f"s_cselect_b32 s{sRowAdj}, {BMASK}, 0")
    for g in range(3):
        e.s(f"s_mov_b32 s{sVm+2*g}, {0xff << (8*g):#x}")
        e.s(f"s_mov_b32 s{sVm+2*g+1}, {0xff << (8*g):#x}")
    e.s(f"s_mov_b32 s{sRedo}, 0")
    lane_consts2()
    bias_base()
    V(f"v_and_b32 v{tA}, 3, v{vL}", [tA], [vL])
    V(f"v_cmp_eq_u32 vcc, 0, v{tA}", [], [tA], sw=["vcc"])
    V(f"v_mov_b32 v{tB}, 0x3f803f80", [tB])
    V(f"v_cndmask_b32 v{V0}, 0, v{tB}, vcc", [V0], [tB], sr_=["vcc"])
    for r in range(V0 + 1, V0 + 63): V(f"v_mov_b32 v{r}, v{V0}", [r], [V0])
    aTn, aTo, aTv, aW = 100, 101, 102, 105
    u1, u2, u3, u4 = 106, 107, 108, 109
    V(f"v_bfe_u32 v{u1}, v{vL}, 2, 2", [u1], [vL])
    V(f"v_lshrrev_b32 v{u2}, 5, v{vL}", [u2], [vL])
    V(f"v_lshl_add_u32 v{u3}, v{u2}, 3, v{u1}", [u3], [u1, u2])
    V(f"v_mul_u32_u24 v{u4}, 192, v{u3}", [u4], [u3])
    V(f"v_lshl_add_u32 v{u3}, v{u2}, 2, v{u1}", [u3], [u1, u2])
    V(f"v_mul_u32_u24 v{aTo}, 192, v{u3}", [aTo], [u3])
    V(f"v_bfe_u32 v{u1}, v{vL}, 4, 1", [u1], [vL])
    V(f"v_lshl_add_u32 v{aTo}, v{u1}, 5, v{aTo}", [aTo], [aTo, u1])
    V(f"v_and_b32 v{u3}, 1, v{vL}", [u3], [vL])
    V(f"v_lshl_add_u32 v{aTo}, v{u3}, 4, v{aTo}", [aTo], [aTo, u3])
    V(f"v_lshl_add_u32 v{u4}, v{u3}, 3, v{u4}", [u4], [u4, u3])
    V(f"v_bfe_u32 v{u3}, v{vL}, 1, 1", [u3], [vL])
    V(f"v_lshl_add_u32 v{aTo}, v{u3}, 3, v{aTo}", [aTo], [aTo, u3])
    V(f"v_lshl_add_u32 v{u1}, v{u1}, 1, v{u3}", [u1], [u1, u3])
    V(f"v_lshl_add_u32 v{aTn}, v{u1}, 4, v{u4}", [aTn], [u1, u4])
    V(f"v_add_u32 v{u4}, s{sL}, v{u4}", [u4], [u4])
    V(f"v_lshlrev_b32 v{u1}, 3, v{u1}", [u1], [u1])
    for t in range(3):
        tab = [(72 + 8 * t) if g == t else (24 * t + 8 * (g - (g > t))) for g in range(4)]
        word = sum(c << (8 * g) for g, c in enumerate(tab))
        e.s(f"s_mov_b32 s{sT+6}, {word:#x}")
        V(f"v_lshrrev_b32 v{u2}, v{u1}, s{sT+6}", [u2], [u1])
        V(f"v_and_b32 v{u2}, 0xff, v{u2}", [u2], [u2])
        V(f"v_lshl_add_u32 v{aTv+t}, v{u2}, 1, v{u4}", [aTv + t], [u2, u4])
    V(f"v_add_u32 v{aW}, s{sL}, v{vWb}", [aW], [vWb])
    TR = "ds_read_b64_tr_b16"
    FR = 128
    def vstage():
        for t in range(3):
            e.ds_read(FR + 4 * t, 2, aTv + t, 0, op=TR)
            e.ds_read(FR + 4 * t + 2, 2, aTv + t, 4 * 192, op=TR)
        for t in range(3): e.ds_write(aW, FR + 4 * t, 4, t * 1024)
    e.s(f"s_cmp_ge_u32 s{sWave}, 4")
    e.s("s_cbranch_scc1 L_ypre")
    tS = 112
    for i in range(3):
        d = tS + i
        V(f"v_add_u32 v{tA}, {64*i}, v{vL}", [tA], [vL])
        V(f"v_mul_u32_u24 v{tB}, 43691, v{tA}", [tB], [tA])
        V(f"v_lshrrev_b32 v{tB}, 19, v{tB}", [tB], [tB])
        V(f"v_lshrrev_b32 v{tC}, 2, v{tB}", [tC], [tB])
        V(f"v_sub_u32 v{tC}, v{tC}, v{tB}", [tC], [tC, tB])
        V(f"v_and_b32 v{tC}, 3, v{tC}", [tC], [tC])
        V(f"v_add_u32 v{d}, v{tA}, v{tC}", [d], [tA, tC])
        V(f"v_mad_u32_u24 v{tC}, v{tB}, 12, 12", [tC], [tB])
        V(f"v_cmp_ge_u32 vcc, v{d}, v{tC}", [], [d, tC], sw=["vcc"])
        V(f"v_subrev_u32 v{tA}, 12, v{d}", [tA], [d])
        V(f"v_cndmask_b32 v{d}, v{d}, v{tA}, vcc", [d], [d, tA], sr_=["vcc"])
        V(f"v_lshl_add_u32 v{d}, v{d}, 4, s{sStage}", [d], [d])
    if cfg.x1 == 0:
        for k in range(6, 12): xload(k, sOff)
    e.s("s_waitcnt vmcnt(%d)" % ((12 if cfg.x1 == 0 else 6) - (6 if cfg.xfirst else 0)))
    stamp(14)
    if cfg.x1 == 1:
        for k in range(6, 12): xload(k, sOff)
    vstage()
    e.s(f"s_cmp_eq_u32 s{sWave}, 3")
    e.s("s_cbranch_scc1 L_nobias")
    e.s(f"s_mov_b32 s{sT+6}, {f32(LOG2E):#x}")
    e.s(f"s_mov_b32 s{sT+7}, {f32(MASKV):#x}")
    V(f"v_cmp_gt_u32 vcc, 180, v{bP}", [], [bP], sw=["vcc"])
    e.nop(4)
    e.s("s_mov_b64 exec, vcc")
    for h in range(4):
        o = 144 + 8 * h
        for el in range(4):
            src = bA + 2 * (3 - el) + (h >> 1)
            d = o + el
            if h & 1: V(f"v_and_b32 v{d}, 0xffff0000, v{src}", [d], [src])
            else: V(f"v_lshlrev_b32 v{d}, 16, v{src}", [d], [src])
            V(f"v_mul_f32 v{d}, s{sT+6}, v{d}", [d], [d])
            V(f"v_subrev_f32 v{d+4}, s{sT+7}, v{d}", [d + 4], [d])
        off = (h >> 1) * 5760 + (h & 1) * 192
        e.ds_write(bL, o, 4, off)
        e.ds_write(bL, o + 4, 4, off + BMASK)
    e.s("s_mov_b64 exec, -1")
    e.label("L_nobias")
    e.reset()
    stamp(15)
    if cfg.x1 == 2:
        for k in range(6, 12): xload(k, sOff)
    X12 = [set(R(Xr(k // 6, k % 6), 4)) for k in range(12)]
    e.vm = list(X12) if cfg.x1 < 3 else X12[:6]
    if cfg.x1 >= 3:
        e._waits(R(Xr(0, cfg.x1 - 3), 4))
        for k in range(6, 12): xload(k, sOff)
    if cfg.flagB:
        V(f"v_mov_b32 v{tA}, {FLAG}", [tA])
        V(f"v_mov_b32 v{tB}, 0", [tB])
        e.ds_write(tA, tB, 1, 0)
    for i in range(6): e.ds_write(tS + i % 3, Xr(0, i), 4, 3072 * (i >= 3))
    for f in xstage(0)[6:]: f()
    e.wait(lg=0)
    e.s("s_barrier")
    stamp(16)
    e.s("s_branch L_go")
    e.label("L_ypre")
    e.reset()
    e.s("s_waitcnt vmcnt(0)")
    e.s(f"s_cmp_ge_u32 s{sWave}, 6")
    e.s("s_cbranch_scc1 L_ykst")
    vstage()
    e.s("s_branch L_ybar")
    e.label("L_ykst")
    e.reset()
    V(f"v_add_u32 v{u3}, s{sL}, v{aTn}", [u3], [aTn])
    for i in range(9):
        o = (i // 3) * 9216 + 64 * (i % 3)
        e.ds_read(FR + 4 * i, 2, u3, o, op=TR)
        e.ds_read(FR + 4 * i + 2, 2, u3, o + 4 * 192, op=TR)
    for i in range(9): e.ds_write(aW, FR + 4 * i, 4, (i // 3) * 9216 + (i % 3) * 1024)
    e.label("L_ybar")
    e.reset()
    e.s("s_waitcnt lgkmcnt(0)")
    e.s("s_barrier")
    stamp(16)
    e.s(f"s_sub_u32 s{sT}, s{sWave}, 4")
    e.s(f"s_lshl_b32 s{sT}, s{sT}, 1")
    e.s(f"s_min_u32 s{sT}, s{sT}, 5")
    e.s(f"s_mul_i32 s{sKA}, s{sT}, 9216")
    e.s(f"s_mov_b32 m0, s{sKA}")
    e.s(f"s_mov_b32 s{sT+6}, {f32(CSCALE):#x}")
    blk_dma(sKA)
    def qstage(sb):
        V(f"v_add_u32 v{u3}, s{sb}, v{aTn}", [u3], [aTn])
        V(f"v_add_u32 v{aW}, s{sb}, v{vWb}", [aW], [vWb])
        for T in range(3):
            e.ds_read(FR + 4 * T, 2, u3, 64 * T, op=TR)
            e.ds_read(FR + 4 * T + 2, 2, u3, 64 * T + 4 * 192, op=TR)
        for r in range(FR, FR + 12):
            V(f"v_lshlrev_b32 v{u1}, 16, v{r}", [u1], [r])
            V(f"v_and_b32 v{u2}, 0xffff0000, v{r}", [u2], [r])
            V(f"v_mul_f32 v{u1}, s{sT+6}, v{u1}", [u1], [u1])
            V(f"v_mul_f32 v{u2}, s{sT+6}, v{u2}", [u2], [u2])
            e.cvt(r, u1, u2)
            if r % 4 == 3: e.ds_write(aW, r - 3, 4, ((r - FR) // 4) * 1024)
    e.s(f"s_cmp_ge_u32 s{sWave}, 6")
    e.s("s_cbranch_scc1 L_ywo")
    e.s(f"s_add_u32 s{sKB}, s{sKA}, 9216")
    e.s(f"s_mov_b32 m0, s{sKB}")
    e.nop(1)
    blk_dma(sKB)
    ny = 6 if cfg.yx == "postA" else 0
    for k in range(ny): xload(k, sOff)
    e.s(f"s_waitcnt vmcnt({3 + ny})")
    qstage(sKA)
    e.s(f"s_waitcnt vmcnt({ny})")
    qstage(sKB)
    e.s("s_branch L_ydone")
    e.label("L_ywo")
    e.reset()
    e.s(f"s_sub_u32 s{sT}, s{sWave}, 6")
    e.s(f"s_mul_i32 s{sKB}, s{sT}, 9216")
    e.s(f"s_add_u32 m0, s{sKB}, {WOB}")
    e.s(f"s_mov_b32 s{sT+1}, s{sKB}")
    for j in range(9):
        e.bload_lds(vWb, SWO, sT + 1)
        if j < 8:
            e.s("s_add_u32 m0, m0, 1024")
            e.s(f"s_add_u32 s{sT+1}, s{sT+1}, 1024")
    for k in range(ny): xload(k, sOff)
    e.s(f"s_waitcnt vmcnt({9 + ny})")
    qstage(sKA)
    e.s(f"s_add_u32 s{sT}, s{sKB}, {WOB}")
    V(f"v_add_u32 v{u3}, s{sT}, v{aTo}", [u3], [aTo])
    V(f"v_add_u32 v{u4}, s{sT}, v{vWb}", [u4], [vWb])
    e.s(f"s_waitcnt vmcnt({ny})")
    F2 = 48
    for i in range(9):
        e.ds_read(F2 + 4 * i, 2, u3, (i // 3) * 3072 + 64 * (i % 3), op=TR)
        e.ds_read(F2 + 4 * i + 2, 2, u3, (i // 3) * 3072 + 64 * (i % 3) + 8 * 192, op=TR)
    for i in range(9): e.ds_write(u4, F2 + 4 * i, 4, i * 1024)
    e.label("L_ydone")
    e.reset()
    if cfg.yx == "preB":
        for k in range(12): xload(k, sOff)
    if cfg.yx == "postA":
        e.vm = X12[:6]
        for k in range(6, 12): xload(k, sOff)
        for f in xstage(0): f()
    e.s("s_waitcnt lgkmcnt(0)")
    if cfg.flagB:
        V(f"v_mov_b32 v{tA}, {FLAG}", [tA])
        V(f"v_mov_b32 v{tB}, 1", [tB])
        e.s("s_mov_b64 exec, 1")
        e.s(f"ds_add_u32 v{tA}, v{tB}")
        e.lg.append(set())
        e.s("s_mov_b64 exec, -1")
    else:
        e.s("s_barrier")
    stamp(15)
    if cfg.solo: e.s("s_branch L_fin")
    if cfg.yx == "postB":
        for k in range(12): xload(k, sOff)
    if cfg.yx != "postA":
        for f in xstage(0): f()
        e.wait(lg=0)
    e.label("L_go")
    e.reset()
    V(f"v_mov_b32 v{V0+63}, v{V0}", [V0 + 63], [V0])
    e.vm = X12[6:] if not cfg.dir0 else list(X12)

    WB = [96, 100, 120, 124]
    chains = [("V", 0), ("V", 1), ("V", 2), ("K", 0), ("K", 1), ("K", 2), ("Q", 0), ("Q", 1), ("Q", 2)]
    tile_of = {"Q": 0, "K": 3, "V": 6}
    A0, A1 = (T0, T1), (80, 104)
    accs = [A1, A0, A1, A0, A1, A0, A1, A0, A0]
    frags = [(c, s) for c in range(len(chains)) for s in range(6)]
    OA = T1
    TORD = [(0, 1), (0, 0), (1, 1), (1, 0)] if cfg.diag else [(0, 0), (0, 1), (1, 0), (1, 1)]
    def tile(n): return (n >> 2,) + TORD[n & 3]
    ring = {}
    def wread(n):
        if n < len(frags) and not (cfg.exp_now and n % 36 > 3):
            c, s = frags[n]
            kind, t = chains[c]
            e.ds_read(WB[n % 4], 4, vWb, s * SBQ + (tile_of[kind] + t) * 1024)
    def cvts_of(c, only=None):
        kind, t = chains[c]
        out = []
        for it in range(2):
            a = accs[c][it]
            if only:
                if it != only[0]: continue
                a = only[1]
            if kind == "V":
                for k0 in range(0, 8, 2):
                    g = [lambda: e.s(f"s_mov_b64 exec, s[{sVm+2*t}:{sVm+2*t+1}]")]
                    if not cfg.exp_nocv: g += [lambda k=k, a=a, it=it: e.cvt(Vr(3, 8 * it + k), a + 2 * k, a + 2 * k + 1) for k in (k0, k0 + 1)]
                    g += [lambda: e.s("s_not_b64 exec, exec")]
                    g += [lambda k=k, a=a, it=it: e.cvt(Vr(t, 8 * it + k), a + 2 * k, a + 2 * k + 1) for k in (k0, k0 + 1)]
                    g += [lambda: e.s("s_mov_b64 exec, -1")]
                    out.append(g)
            else:
                for k0 in range(0, 8, cfg.gsz):
                    g = []
                    for k in range(k0, k0 + cfg.gsz):
                        p = 8 * t + k
                        d = Qr(it, p) if kind == "Q" else Kr(p // 6, it, p % 6)
                        g.append(lambda d=d, k=k, a=a: e.cvt(d, a + 2 * k, a + 2 * k + 1))
                    out.append(g)
        return out
    def bias_read(n, q):
        if cfg.exp_nobias: return
        h, it, jt = tile(n)
        dl = it - jt
        off = (((h >> 1) * 15 + (4 * dl - q + 7)) * 24 + (h & 1) * 12) * 16
        e.ds_read(ring[n] + 4 * q, 4, vB0 if dl == 0 else vB1, off)
    def dense(extra=(), pre=True, c0=0, pend=()):
        extra = list(extra)
        pend = list(pend)
        if pre:
            for n in range(3): wread(6 * c0 + n)
        for c, (kind, t) in enumerate(chains):
            if c < c0: continue
            if c == 1: assert not any(getattr(f, "valu", False) for f in extra)
            if c == cfg.p1chain:
                if nob[0]: rushprio(1)
                else: prio(1)
            last = c == len(chains) - 1
            if last:
                boosted([f for g in pend for f in g])
                pend = []
            for s in range(6):
                n = 6 * c + s
                w = WB[n % 4]
                for it in range(2):
                    D = accs[c][it]
                    A, B = (Xr(it, s), w) if kind == "V" else (w, Xr(it, s))
                    if not (cfg.exp_nod and s == 3): e.mfma(D, A, B, 0 if s == 0 else None)
                    if c0 == 3 and it == 0 and n + 3 == 36: barB()
                    if it == 0: wread(n + 3)
                    if last and it == 0 and s == 4:
                        for q in range(4): bias_read(0, q)
                    slot = 2 * s + it
                    pace(cfg.sgapD)
                    if slot >= 2 and pend and (len(pend) > (11 - slot) // 2 + 0 or it == 1):
                        boosted(pend.pop(0))
                    elif extra: popn(extra, 2)
            assert not pend
            if c == 3: flush()
            pend = cvts_of(c)
        assert not extra
        return [f for g in pend for f in g]
    def flag_read():
        V(f"v_mov_b32 v{vX}, {FLAG}", [vX])
        e.ds_read(vRc, 1, vX, 0)
    def barB():
        if cfg.flagB:
            V(f"v_readfirstlane_b32 s{sT}, v{vRc}", [], [vRc], sw=[sT], rl=True)
            e.nop(2)
            e.s(f"s_cmp_lt_u32 s{sT}, 4")
            e.s("s_cbranch_scc1 L_poll")
            e.label("L_pollr")
            return
        e.s(f"s_cmp_ge_u32 s{sWave}, 4")
        e.s("s_cbranch_scc1 L_nobarB")
        e.s("s_barrier")
        e.t -= 1
        e.label("L_nobarB")
    def dense_first():
        NS = cfg.nsingle
        WI = [104, 108, 112, 116, 80, 84, 88, 92]
        fr = [(it, c, s) for it in range(2) for c in range(NS) for s in range(6)]
        def rd(n):
            if n < len(fr) and not (cfg.exp_now and n > 3):
                it, c, s = fr[n]
                kind, t = chains[c]
                e.ds_read(WI[n % 8], 4, vWb, s * SBQ + (tile_of[kind] + t) * 1024)
        for n in range(cfg.deep): rd(n)
        pend, extra = [], []
        for ci in range(2 * NS):
            it, c = ci // NS, ci % NS
            D = [T1, T0][ci % 2]
            if ci == 2 * cfg.p1chain: prio(1)
            if ci == NS - 1: extra = xstage(1)
            if cfg.xmix and ci == cfg.xmixci:
                e._waits(R(24, 24))
                extra = [lambda: rare(sWw1, "wrap+")] + xdma(1, sOff + 4) + [lambda: rare(sWw1, "wrap-")]
            for s in range(6):
                n = 6 * ci + s
                w = WI[n % 8]
                A, B = (Xr(it, s), w) if c < 3 else (w, Xr(it, s))
                if not (cfg.exp_nod and s == 3): e.mfma(D, A, B, 0 if s == 0 else None)
                rd(n + cfg.deep)
                if extra:
                    for _ in range(2):
                        if extra: extra.pop(0)()
                if s >= 2 and pend: boosted(pend.pop(0))
                if ci == 2 * NS - 1:
                    if s == 0 and cfg.flagB: flag_read()
                    if s == 2 and NS == 6: barB()
                    if s >= 3: wread(6 * NS + s - 3)
            assert not pend and not extra
            pend = cvts_of(c, (it, D))
        if NS == 3:
            for g in pend: boosted(g)
            pend = []
        return pend
    def S_mfma(n, part, cfrom=None):
        h, it, jt = tile(n)
        if part == 0: e.mfma(ring[n], Kr(h, jt, 0), Qr(it, 6 * h), 0 if cfg.exp_nobias else None if cfrom is None else ("c", ring[cfrom]))
        elif not cfg.exp_nok8: e.mfma(ring[n], Kr(h, jt, 4), Qr(it, 6 * h + 4), None, k8=True)
    def PV_mfma(n, kk):
        h, it, jt = tile(n)
        e.mfma(OA, Vr(h, 8 * jt + 4 * kk), ring[n] + 4 * kk, 0 if (n % 2 == 0 and kk == 0) else None)
    def norm(u, check=True):
        h, it = u >> 1, u & 1
        regs = [OA + r for r in range(16) if r >> 2 != h]
        l = OA + 4 * h
        ops = [lambda: e.rcp(vRc, l)]
        if not cfg.exp_nomul: ops += [lambda r=r: e.mul(r, r, vRc) for r in regs]
        if check:
            if u == 0: ops.append(lambda: V(f"v_max_f32_e64 v{vChk}, v{l}, v{vRc}", [vChk], [l, vRc]))
            else: ops.append(lambda: V(f"v_max3_f32 v{vChk}, v{vChk}, v{l}, v{vRc}", [vChk], [vChk, l, vRc]))
        ops += [lambda k=k: e.cvt(Qr(it, 6 * h + k), regs[2 * k], regs[2 * k + 1]) for k in range(6)]
        return ops
    def attention(lastc, hooks):
        if not cfg.diag:
            for q in range(4): bias_read(1, q)
        else:
            for q in range(4): bias_read(1, q)
        S_mfma(0, 0)
        for f in lastc[:4]: f()
        S_mfma(0, 1)
        for f in lastc[4:]: f()
        for n in range(17):
            va = []
            if n < 16:
                slot = ring[n]
                for k in range(8):
                    va.append(lambda k=k: e.exp(slot + 2 * k, slot + 2 * k))
                    if not cfg.exp_noexp: va.append(lambda k=k: e.exp(slot + 2 * k + 1, slot + 2 * k + 1))
                    if k >= 1: va.append(lambda k=k: e.cvt(slot + k - 1, slot + 2 * k - 2, slot + 2 * k - 1))
                va.append(lambda: e.cvt(slot + 7, slot + 14, slot + 15))
            nrm = norm((n - 1) >> 1) if (n >= 2 and n % 2 == 0) else []
            pv, sm = [], []
            if n >= 1: pv = [lambda: PV_mfma(n - 1, 0), lambda: PV_mfma(n - 1, 1)]
            ds = []
            if n + 1 < 16:
                if cfg.diag and n % 4 == 0:
                    sm = [lambda: S_mfma(n + 2, 0, cfrom=n + 1), lambda: S_mfma(n + 1, 0), lambda: S_mfma(n + 1, 1)]
                elif cfg.diag and n % 4 == 1:
                    sm = [lambda: S_mfma(n + 1, 1)]
                else:
                    sm = [lambda: S_mfma(n + 1, 0), lambda: S_mfma(n + 1, 1)]
            if cfg.mord == 0: mf = pv + sm
            elif cfg.mord == 1: mf = sm + pv
            elif cfg.mord == 2:
                mf = []
                a, b = list(pv), list(sm)
                while a or b:
                    if a: mf.append(a.pop(0))
                    if b: mf.append(b.pop(0))
            else:
                mf = []
                a, b = list(sm), list(pv)
                while a or b:
                    if a: mf.append(a.pop(0))
                    if b: mf.append(b.pop(0))
            if n + 2 < 16 and not (cfg.diag and n % 4 == 0):
                ds = [lambda q=q: bias_read(n + 2, q) for q in range(4)]
            ds += hooks.get(n, [])
            g = cfg.mgap
            pos = {5: [(g - 1) * i for i in range(5)], 4: [g * i for i in range(4)], 3: [(g + 1) * i for i in range(3)], 2: [0, g + 1]}[len(mf)]
            if g <= 3: pos = [g * i for i in range(len(mf))]
            if n == 0: pos = [3, 8, 13][:len(mf)]
            seq = va + nrm
            if va and nrm: seq = va[:-1] + nrm[:1] + va[-1:] + nrm[1:]
            per = -(-len(ds) // len(mf))
            mi = 0
            for i in range(len(seq) + 1):
                while mi < len(mf) and (pos[mi] <= i or i == len(va)):
                    mf[mi](); mi += 1
                    if n == 16 and mi == 1: continue
                    for _ in range(len(ds) if n == 16 else per):
                        if ds: ds.pop(0)()
                if i < len(seq): seq[i]()
            assert not ds
    def check(bit):
        V(f"v_cmp_ngt_f32 vcc, {f32(cfg.thr):#x}, v{vChk}", [], [vChk], sw=["vcc"])
        return [lambda: e.s("s_cmp_lg_u64 vcc, 0"),
                lambda: e.s(f"s_cselect_b32 s{sT+2}, {bit}, 0"),
                lambda: e.s(f"s_or_b32 s{sRedo}, s{sRedo}, s{sT+2}")]
    YW = [160, 164, 168, 172, 64, 68, 72, 76]
    YA = [128, 144, T0, 128, 144, T0]
    yfr = [(it, t, s) for it in range(2) for t in range(3) for s in range(6)]
    LIN = [[80, 84, 88, 92, 96, 100], [128, 132, 136, 140, 160, 164]]
    def yread(n):
        if n < len(yfr) and not (cfg.exp_now and n > 3):
            it, t, s = yfr[n]
            e.ds_read(YW[n % 8], 4, vWo, s * 3072 + t * 1024)
    def popn(q, n, valu=True):
        for _ in range(n):
            if not q or (not valu and getattr(q[0], "valu", False)): return
            f = q.pop(0); f()
            if getattr(f, "valu", False): return
    nst = [0]
    stq, sclk = [], [0]
    def pace(gap):
        sclk[0] += 1
        if stq and sclk[0] >= gap:
            stq.pop(0)(); sclk[0] = 0
    def flush():
        while stq: stq.pop(0)()
    def ystore(it, i, so):
        nst[0] += 1
        if cfg.exp_nost == 1 or (cfg.exp_nost == 2 and nst[0] > 12) or (cfg.exp_nost == 3 and nst[0] <= 12): return
        e.bstore(LIN[it][i], 4, vG + i % 3, SO, so + 2 * it + (i >= 3), 0, cfg.stflags0 if nst[0] <= 12 else cfg.stflagsL if 18 < nst[0] <= 24 else cfg.stflags)
    def ytail(c, so):
        it, t = c // 3, c % 3
        a = YA[c]
        cv = [lambda k=k: e.cvt(a + k, a + 2 * k, a + 2 * k + 1) for k in range(8)]
        ops = [lambda: boosted(cv[:4]), lambda: e.ds_write(tok(2 * t)[0], a, 4, tok(2 * t)[1]),
               lambda: boosted(cv[4:]), lambda: e.ds_write(tok(2 * t + 1)[0], a + 4, 4, tok(2 * t + 1)[1])]
        ops[0].valu = ops[2].valu = True
        if cfg.exp_noy:
            nst[0] += 6 * (t == 2)
            return [ops[0], ops[2]]
        if t == 2:
            ops += [lambda i=i: e.ds_read(LIN[it][i], 4, vLin, 1024 * i) for i in range(6)]
            ops += [lambda: stq.extend([lambda i=i: ystore(it, i, so) for i in (cfg.sord if it == 0 else range(6))])]
        return ops
    def outproj(so, first=(), mid=(), post=()):
        V(f"v_add_u32 v{vWo}, {WOB}, v{vWb}", [vWo], [vWb])
        for n in range(cfg.deep): yread(n)
        todo = list(first)
        post = list(post)
        held = []
        for c in range(6):
            for s in range(6):
                n = 6 * c + s
                e.mfma(YA[c], YW[n % 8], Qr(c // 3, 4 * s), 0 if s == 0 else None)
                yread(n + cfg.deep)
                pace(cfg.sgapY)
                if c == 5 and s >= 3 and post:
                    assert nst[0] % 12 >= 2, nst
                    post.pop(0)()
                if s >= 2 or c in (0, 4, 5):
                    popn(todo, 2 if c in (1, 2) else 4 if (c == 0 or len(mid) > 12) else 3)
            t = ytail(c, so)
            if mid and 3 <= c <= cfg.midc:
                held += [t[1], t[3]]; t = [t[0], t[2]] + t[4:]
            if mid and c == cfg.midc:
                if c == 2: t = t[:10] + list(mid) + t[10:]
                else: t = t[:2] + list(mid) + held + t[2:]
            todo += t
        assert not post
        while any(f in mid for f in todo): todo.pop(0)()
        flush()
        return todo

    YF = [4 * f for f in range(12)] + [160, 164, 168, 172, 64, 68]
    def yfread(f): e.ds_read(YF[f], 4, vWo, (f % 6) * 3072 + (f // 6) * 1024)
    def outproj_last(so, first):
        LIN[1][:] = [104, 108, 112, 116, 120, 124]
        for f in (16, 17): yfread(f)
        todo = list(first)
        pA, pA2, pG = vChk, vX, vRc
        def paddr():
            t1, t2 = 72, 73
            V(f"v_lshrrev_b32 v{t1}, 2, v{vL}", [t1], [vL])
            V(f"v_lshrrev_b32 v{t2}, 4, v{vL}", [t2], [vL])
            V(f"v_sub_u32 v{t2}, v{t2}, v{t1}", [t2], [t1, t2])
            V(f"v_and_b32 v{t2}, 3, v{t2}", [t2], [t2])
            V(f"v_and_b32 v{pG}, 3, v{vL}", [pG], [vL])
            V(f"v_add_u32 v{t2}, v{t2}, v{pG}", [t2], [t2, pG])
            V(f"v_mul_u32_u24 v{pA}, 192, v{t1}", [pA], [t1])
            V(f"v_lshl_add_u32 v{pG}, v{pG}, 4, v{pA}", [pG], [pG, pA])
            V(f"v_lshl_add_u32 v{pA}, v{t2}, 4, v{pA}", [pA], [t2, pA])
            V(f"v_add_u32 v{pA}, s{sStage}, v{pA}", [pA], [pA])
            V(f"v_cmp_le_u32 vcc, 4, v{t2}", [], [t2], sw=["vcc"])
            V(f"v_add_u32 v{pA2}, 128, v{pA}", [pA2], [pA])
            V(f"v_subrev_u32 v{t2}, 64, v{pA}", [t2], [pA])
            V(f"v_cndmask_b32 v{pA2}, v{pA2}, v{t2}, vcc", [pA2], [pA2, t2], sr_=["vcc"])
            e.s(f"s_mov_b32 s{sT}, {ROW - 8 * 192}")
            V(f"v_lshrrev_b32 v{t1}, 5, v{vL}", [t1], [vL])
            V(f"v_mad_u32_u24 v{pG}, v{t1}, s{sT}, v{pG}", [pG], [t1, pG])
            rare(sWw1, "wrapP")
        paddr.valu = True
        if cfg.piece: todo.append(paddr)
        def ptail(c):
            t = c - 3
            ops = ytail(c, so)[:4]
            r = 8 * t
            a, o = (pA, 64 * t) if t < 2 else (pA2, 0)
            ops += [lambda j=j: e.ds_read(r + 4 * j, 4, a, o + 3072 * j) for j in range(2)]
            ops += [lambda: stq.extend([lambda j=j: e.bstore(r + 4 * j, 4, pG, SO, so + 2 + j, 64 * t, cfg.stflagsL) for j in range(2)])]
            return ops
        for c in range(6):
            for s in range(6):
                e.mfma(YA[c], YF[6 * (c % 3) + s], Qr(c // 3, 4 * s), 0 if s == 0 else None)
                t0 = e.t
                pace(cfg.sgapY)
                popn(todo, 2 if c < 3 else 3, valu=(s >= 2 or c == 0))
                if c and s < 2 and e.t - t0 < 4: e.nop(4 - (e.t - t0))
            todo += ptail(c) if (cfg.piece and c >= 3) else ytail(c, so)
        flush()
        for f in todo: f()
        flush()
        nst[0] = 24
        LIN[1][:] = [128, 132, 136, 140, 160, 164]
    prio(0)
    stamp(0)
    for n in range(16): ring[n] = [0, 16, 32, T0][n % 4]
    ring[8] = ring[12] = 128
    ring[13] = 144
    lastc = dense(c0=cfg.nsingle, pend=dense_first(), pre=False)
    first[0] = False
    stamp(1)
    prio(2)
    def wrapped(fs): return [lambda: rare(sWw1, "wrap+")] + fs + [lambda: rare(sWw1, "wrap-")]
    if cfg.xmix:
        grp = lambda ks: wrapped([lambda k=k: xload(k, sOff + 4) for k in ks])
        hooks = {6: grp(range(0, 4)), 11: grp(range(4, 6))}
    elif cfg.xdma:
        hooks = {cfg.d0: wrapped(xdma(0, sOff + 4)), 11: xread(0),
                 12: wrapped([lambda: e._waits(R(0, 24))] + xdma(1, sOff + 4))}
    else:
        grp = lambda ks: wrapped([lambda k=k: xload(k, sOff + 4) for k in ks])
        hooks = {6: grp(range(0, 4)), 11: grp(range(4, 8)), 16: grp(range(8, 12))}
        if cfg.xlate == 1: hooks = {16: grp(range(0, 12))}
        if cfg.xiny: hooks = {}
        if cfg.xlate == 2: hooks = {11: grp(range(0, 8)), 16: grp(range(8, 12))}
        if cfg.xlate == 3: hooks = {14: grp(range(0, 8)), 16: grp(range(8, 12))}
    if cfg.otouch >= 0:
        def touch():
            e.s(f"s_mov_b32 s{sT}, {ROW}")
            V(f"v_and_b32 v{vX}, 3, v{vL}", [vX], [vL])
            V(f"v_mul_lo_u32 v{vX}, v{vX}, s{sT}", [vX], [vX])
            e.bload(vWo, 1, vX, SO, sOff, 0)
            e.bload(vX, 1, vX, SO, sOff + 2, 0)
        hooks[cfg.otouch] = [touch]
    attention(lastc, hooks)
    ck = check(1)
    stamp(2)
    if cfg.rush == 1:
        nob[0] = True
        rushprio(0)
    else: prio(cfg.yprio)
    late = cfg.xlate in (1, 3)
    if cfg.xiny: ck = ck + grp(range(0, 12))
    tail = outproj(sOff, first=ck + (xread(1) + xstage(0) if cfg.xmix else xread(1) if cfg.xdma else [] if late else xstage(0)),
                   mid=([] if (cfg.xdma or cfg.xmix) else xstage(0) + xstage(1) if late else xstage(1)),
                   post=[lambda n=n: wread(n) for n in range(3)])
    stamp(3)
    if cfg.yprio and not cfg.lowatt: prio(0)
    if cfg.rush == 2:
        nob[0] = True
        rushprio(0)
    rare(sWw1, "colmask")
    lastc = dense(extra=tail, pre=False)
    stamp(9)
    nob[0] = False
    prio(2)
    hk = {}
    if cfg.lowatt:
        e.s(f"s_cmp_ge_u32 s{sWave}, 4")
        e.s("s_cbranch_scc1 L_lowa")
        e.s("s_setprio 0")
        e.label("L_lowa")
        hk = {cfg.lowatt: [lambda: e.s("s_setprio 2")]}
    if cfg.ypre:
        yf = lambda fs: [lambda f=f: yfread(f) for f in fs]
        hk[7] = [lambda: V(f"v_add_u32 v{vWo}, {WOB}, v{vWb}", [vWo], [vWb])]
        hk[8] = yf(range(0, 4)); hk[12] = yf(range(4, 8)); hk[15] = yf(range(12, 16)); hk[16] = yf(range(8, 12))
    attention(lastc, hk)
    ck = check(2)
    stamp(10)
    prio(0)
    rare(sWw1, "wrap+")
    if cfg.ypre: outproj_last(sOff + 4, ck)
    else:
        tail = outproj(sOff + 4, first=ck)
        stamp(11)
        for f in tail: f()
        flush()
    stamp(12)
    e.s(f"s_cmp_lg_u32 s{sRedo}, 0")
    e.s("s_cbranch_scc1 L_redo")
    e.label("L_fin")
    if cfg.spin:
        e.s("s_waitcnt vmcnt(0)")
        if cfg.gspin:
            e.raw("    v_mov_b32 v3, 0")
            e.raw("    global_load_dword v2, v3, s[14:15] sc0 sc1")
            e.raw("    s_waitcnt vmcnt(0)")
            e.raw("    v_readfirstlane_b32 s88, v2")
            e.nop(4)
            e.s("s_not_b32 s88, s88")
        if cfg.mile >= 0:
            e.s("s_sub_u32 s92, s92, s88")
            e.s("s_lshl_b32 s92, s92, 2")
            if cfg.milew:
                e.s(f"s_cmp_lt_u32 s{sWave}, 4" if cfg.milew == 1 else f"s_cmp_ge_u32 s{sWave}, 4")
                e.s("s_cselect_b32 s92, s92, 0")
            e.s("s_min_u32 s92, s92, 20000")
            e.s("s_add_u32 s88, s88, s92")
        e.label("L_spin")
        e.s("s_memrealtime s[90:91]")
        e.s("s_waitcnt lgkmcnt(0)")
        e.s("s_sub_u32 s90, s90, s88")
        e.s(f"s_cmp_lt_i32 s90, {cfg.spin}")
        e.s("s_cbranch_scc1 L_spin")
    if cfg.stamps:
        e.s("s_waitcnt vmcnt(0)")
        stamp(17)
        e.raw("    v_writelane_b32 v255, s86, 20")
        e.raw("    v_writelane_b32 v255, s88, 21")
        e.raw("    v_writelane_b32 v255, s94, 22")
        e.s("s_mov_b32 s16, s14"); e.s("s_mov_b32 s17, s15"); e.s("s_mov_b32 s18, 0x100000"); e.s("s_mov_b32 s19, 0x20000")
        e.s(f"s_lshl_b32 s92, s2, 3"); e.s(f"s_add_u32 s92, s92, s{sWave}"); e.s("s_lshl_b32 s92, s92, 8")
        e.raw(f"    v_lshrrev_b32 v254, 2, v{vWb}")
        e.nop(2)
        e.raw("    buffer_store_dword v255, v254, s[16:19], s92 offen")
    e.label("L_end")
    e.s("s_endpgm")

    def wrapcode(sign):
        a, b = (97536, -768) if sign > 0 else (-97536, 768)
        for i, (lo, hi) in enumerate(((0, 0xffff0000), (0xffffffff, 0), (0xffff0000, 0xffffffff))):
            e.s(f"s_mov_b32 exec_lo, {lo:#x}")
            e.s(f"s_mov_b32 exec_hi, {hi:#x}")
            e.raw(f"    v_add_u32 v{vG+i}, {b & 0xffffffff:#x}, v{vG+i}")
            e.s("s_not_b64 exec, exec")
            e.raw(f"    v_add_u32 v{vG+i}, {a & 0xffffffff:#x}, v{vG+i}")
        e.s("s_mov_b64 exec, -1")
    def colmask():
        e.s("s_mov_b32 exec_lo, 0xf0f0f0f0")
        e.s("s_mov_b32 exec_hi, 0x0f0f0f0f")
        e.raw(f"    v_add_u32 v{vB0}, {BMASK}, v{vB0}")
        e.raw(f"    v_mov_b32 v{vB1}, v{vB0}")
        e.s("s_mov_b64 exec, -1")
    def emit_ool(first):
        for n in range(first, len(ool)):
            e.label(f"L_ool{n}")
            if ool[n] == "wrap+": wrapcode(+1)
            elif ool[n] == "wrap-": wrapcode(-1)
            elif ool[n] == "colmask": colmask()
            elif ool[n] == "wrapP":
                e.s("s_mov_b32 exec_lo, 0xffff0000")
                e.s("s_mov_b32 exec_hi, 0xffff0000")
                e.raw(f"    v_add_u32 v{vRc}, {(-768) & 0xffffffff:#x}, v{vRc}")
                e.s("s_not_b64 exec, exec")
                e.raw(f"    v_add_u32 v{vRc}, 97536, v{vRc}")
                e.s("s_mov_b64 exec, -1")
            else: wrapcode(+1); colmask()
            e.s(f"s_branch L_oolr{n}")
    emit_ool(0)
    if cfg.flagB:
        e.label("L_poll")
        e.s(f"ds_read_b32 v{vRc}, v{vX}")
        e.s("s_waitcnt lgkmcnt(0)")
        e.s(f"v_readfirstlane_b32 s{sT}, v{vRc}")
        e.s("s_nop 3")
        e.s(f"s_cmp_lt_u32 s{sT}, 4")
        e.s("s_cbranch_scc1 L_poll")
        e.s("s_branch L_pollr")
    nool = len(ool)
    e.label("L_redo")
    e.reset()
    e.s("s_waitcnt vmcnt(0) lgkmcnt(0)")
    e.nop(16)
    e.s(f"s_ff1_i32_b32 s{sCurE}, s{sRedo}")
    e.s(f"s_lshl_b32 s{sT}, 1, s{sCurE}")
    e.s(f"s_andn2_b32 s{sRedo}, s{sRedo}, s{sT}")
    e.s(f"s_cmp_eq_u32 s{sCurE}, 0")
    e.s(f"s_cselect_b32 s{sWwC}, s{sWw0}, s{sWw1}")
    offsets(sOff, sWwC)
    lane_consts()
    bias_base()
    if direct: xaddr(sWwC, tA)
    rare(sWwC, "both")
    for k in range(12): xload(k, sOff)
    if not direct:
        for it in range(2):
            for f in xstage(it): f()
    for n in range(16): ring[n] = [0, 16][n % 2]
    lastc = dense()
    for f in lastc: f()
    m, m2 = vChk, vWo
    for u in range(8):
        for j in range(2):
            for q in range(4): bias_read(2 * u + j, q)
        for j in range(2):
            S_mfma(2 * u + j, 0); S_mfma(2 * u + j, 1)
        V(f"v_max_f32 v{m}, v0, v1", [m], [0, 1])
        for k in range(1, 16):
            V(f"v_max3_f32 v{m}, v{m}, v{2*k}, v{2*k+1}", [m], [m, 2 * k, 2 * k + 1])
        V(f"v_mov_b32 v{m2}, v{m}", [m2], [m])
        V(f"v_permlane32_swap_b32 v{m}, v{m2}", [m, m2], [m, m2], perm=True)
        e.nop(2)
        V(f"v_max_f32 v{m}, v{m}, v{m2}", [m], [m, m2])
        for k in range(32): V(f"v_sub_f32 v{k}, v{k}, v{m}", [k], [k, m])
        for k in range(32): e.exp(k, k)
        for j in range(2):
            for k in range(8): e.cvt(16 * j + k, 16 * j + 2 * k, 16 * j + 2 * k + 1)
        for j in range(2):
            PV_mfma(2 * u + j, 0); PV_mfma(2 * u + j, 1)
        for f in norm(u, check=False): f()
    for f in outproj(sOff): f()
    flush()
    e.s(f"s_cmp_lg_u32 s{sRedo}, 0")
    e.s("s_cbranch_scc1 L_redo")
    e.s("s_branch L_fin")
    emit_ool(nool)
    e.raw('.section .rodata,"a"')
    e.raw(".p2align 6")
    e.raw(f".amdhsa_kernel {NAME}_kernel")
    e.raw("  .amdhsa_next_free_vgpr 256")
    e.raw("  .amdhsa_next_free_sgpr 96")
    e.raw("  .amdhsa_accum_offset 256")
    e.raw("  .amdhsa_group_segment_fixed_size 0")
    e.raw("  .amdhsa_kernarg_size 72")
    e.raw("  .amdhsa_user_sgpr_count 2")
    e.raw("  .amdhsa_user_sgpr_kernarg_segment_ptr 1")
    e.raw("  .amdhsa_system_sgpr_workgroup_id_x 1")
    e.raw(".end_amdhsa_kernel")
    return e

if __name__ == "__main__":
    cfg = Cfg()
    out = "cdna_kernels/" + NAME + ".s"
    for a in sys.argv[1:]:
        k, v = a.split("=", 1)
        if k == "out": out = v
        else:
            old = getattr(cfg, k)
            setattr(cfg, k, (v in ("1", "True")) if isinstance(old, bool) else type(old)(v))
    e = gen(cfg)
    open(out, "w").write(e.text())
    print(out, e.nins, "instrs", {k: v for k, v in sorted(e.stats.items(), key=lambda x: -x[1])[:12]})
```

```python
import sys, math, struct
from emit import *

NAME = "standalone__window_attn_swin__vision"
def f32(x): return struct.unpack("<I", struct.pack("<f", x))[0]
LOG2E = 1.4426950408889634
CSCALE = LOG2E / math.sqrt(24.0)
MASKV = 100.0 * LOG2E
ROW = 98304
NBYTES = 50331648

class Cfg:
    ldflags = "nt"
    stflags = "sc0 sc1 nt"
    xmode = "lds"
    prio = True
    p1chain = 3
    thr = 2.0**30
    stamps = False
    diag = True
    youngx = "bar"
    boost = True
    gsz = 4
    codepf = True
    spin = 0
    gspin = False
    itm0 = True
    touch = False
    yx = "postB"
    x1 = 2
    xfirst = False
    yprio = 1
    e32 = True
    rush = 0
    exp_nox = False
    exp_noy = False
    exp_nobias = False
    exp_nost = 0
    lowatt = 0
    xdma = False
    d0 = 4
    ypre = True
    rot = False
    stflags0 = "sc0 sc1 nt"
    dir0 = 0
    dflags = ""
    exp_ka = False
    sgapY = 1
    sgapD = 3
    nsingle = 6
    sord = (4, 5, 0, 1, 2, 3)
    xmix = False
    xmixci = 7
    otouch = -1
    xlate = 1
    stflagsL = "sc0 sc1 nt"
    flagB = False
    exp_now = False
    exp_nomul = False
    exp_noexp = False
    exp_nocvtp = False
    mord = 0
    mgap = 5
    deep = 3
    midc = 2
    piece = False
    exp_nok8 = False
    exp_nod = 0
    exp_nocv = False
    xiny = False
    mile = -1
    milew = 0
    wbl2 = 0
    vg = 2
    vnoprio = False
    solo = False

def gen(cfg):
    e = Em()
    e.sfx = "_e32" if cfg.e32 else "_e64"
    X0, T0, T1, Q0, K0, V0 = 0, 48, 64, 80, 128, 176
    vWb, vB0, vB1, vSt, vSl, vG, vChk, vX, vRc, vL, vWo = 240, 241, 242, 243, 244, 247, 250, 251, 252, 253, 254
    SX, SO, SW, SWO, SR = 16, 20, 24, 28, 32
    sWave, sWh, sWw0, sWw1 = 36, 37, 38, 39
    sOff = 44
    sVm = 52
    sRowAdj, sRedo, sCurE, sRow0, sRow1, sWwC = 62, 63, 64, 65, 66, 67
    sT = 72
    sStage = 68
    NT = 9
    SBQ = NT * 1024
    WOB = 6 * SBQ
    BIAS = WOB + 6 * 3072
    BMASK = 11520
    STAGE = BIAS + 2 * BMASK
    STW = 6144
    FLAG = STAGE + 8 * STW
    LDS = FLAG + 64
    direct = False
    ldflags = "" if direct else cfg.ldflags
    def Xr(it, s): return X0 + 24 * it + 4 * s
    def Qr(it, p): return Q0 + 24 * it + p
    def Kr(h, jt, p): return K0 + 12 * h + 6 * ((1 - jt) if cfg.diag else jt) + p
    def Vr(h, p): return V0 + 16 * h + p
    V = e.valu

    hdr = open("cdna_kernels/" + NAME + ".s.ref").read().split("; Override launch")[0]
    e.raw(hdr.rstrip())
    e.raw(f"; @launch grid=(256,1,1) block=(512,1,1) lds={LDS}")
    e.raw('.amdgcn_target "amdgcn-amd-amdhsa--gfx950"')
    e.raw(".text")
    for l in (
        "One workgroup per CU, 8 waves, two windows per wave; waves w and w+4 share a SIMD and run half a window apart.",
        "LDS: weight fragments (transposed once, Wq pre-scaled by log2(e)/sqrt(24)), relative-position bias vectors",
        "(plain and with the -100 shift mask), one 6 KiB transposition stage per wave.",
        "Per window: Q^T,K^T = W^T X^T and V = X Wv -> S^T = K Q^T + bias (bias enters as the MFMA C operand) -> exp2 ->",
        "O^T = V^T P^T (rows of ones in V give the row sums) -> Y^T = Wo^T O^T.  All hand-offs stay in registers.",
        "The exponentials are taken without a shift; every row sum and its reciprocal are checked against 2^30 and a window",
        "that leaves that range is recomputed at L_redo with the true row maximum subtracted.",
        "Generated by gen/gen7.py (hazard padding and counted waits come from gen/emit.py)."):
        e.raw("; " + l)
    e.raw(f".globl {NAME}_kernel")
    e.raw(".p2align 8")
    e.raw(f".type {NAME}_kernel,@function")
    e.label(f"{NAME}_kernel")
    def stamp(idx):
        if cfg.mile == idx:
            e.s("s_memrealtime s[92:93]")
            e.wait(lg=0)
        if not cfg.stamps: return
        e.s("s_memtime s[90:91]")
        e.s("s_memrealtime s[94:95]")
        e.wait(lg=0)
        e.raw(f"    v_writelane_b32 v255, s90, {idx}")
        e.raw(f"    v_writelane_b32 v255, s94, {idx + 32}")
    cur = [0]
    def prio(p):
        cur[0] = p
        if cfg.prio: e.s(f"s_setprio {p}")
    nob = [False]
    def boosted(fs):
        b = cfg.prio and cfg.boost and not nob[0]
        if b: e.s("s_setprio 3")
        for f in fs: f()
        if b: e.s(f"s_setprio {cur[0]}")
    nrush = [0]
    def rushprio(p):
        nrush[0] += 1
        e.s(f"s_setprio {p}")
        e.s(f"s_cmp_lt_u32 s{sWave}, 4")
        e.s(f"s_cbranch_scc1 L_rush{nrush[0]}")
        e.s("s_setprio 3")
        e.label(f"L_rush{nrush[0]}")

    tA, tB, tC = 252, 254, 250
    vLin, vS4, vS5 = vSl, vSl + 1, vSl + 2
    def lane_consts():
        e.s(f"s_mov_b32 s{sT+1}, {ROW - 8 * 192}")
        for i in range(3):
            d = vG + i
            V(f"v_add_u32 v{tA}, {64*i}, v{vL}", [tA], [vL])
            V(f"v_mul_u32_u24 v{tB}, 43691, v{tA}", [tB], [tA])
            V(f"v_lshrrev_b32 v{tB}, 19, v{tB}", [tB], [tB])
            V(f"v_lshrrev_b32 v{tC}, 2, v{tB}", [tC], [tB])
            V(f"v_sub_u32 v{tC}, v{tC}, v{tB}", [tC], [tC, tB])
            V(f"v_and_b32 v{tC}, 3, v{tC}", [tC], [tC])
            V(f"v_sub_u32 v{d}, v{tA}, v{tC}", [d], [tA, tC])
            V(f"v_mul_u32_u24 v{tC}, 12, v{tB}", [tC], [tB])
            V(f"v_cmp_lt_i32 vcc, v{d}, v{tC}", [], [d, tC], sw=["vcc"])
            V(f"v_add_u32 v{tA}, 12, v{d}", [tA], [d])
            V(f"v_lshrrev_b32 v{tB}, 3, v{tB}", [tB], [tB])
            V(f"v_cndmask_b32 v{d}, v{d}, v{tA}, vcc", [d], [d, tA], sr_=["vcc"])
            V(f"v_lshlrev_b32 v{d}, 4, v{d}", [d], [d])
            V(f"v_mad_u32_u24 v{d}, v{tB}, s{sT+1}, v{d}", [d], [tB, d])
    def lane_consts2():
        e.s(f"s_mul_i32 s{sStage}, s{sWave}, {STW}")
        e.s(f"s_add_u32 s{sStage}, s{sStage}, {STAGE}")
        V(f"v_add_u32 v{vLin}, s{sStage}, v{vWb}", [vLin], [vWb])
        V(f"v_and_b32 v{tA}, 31, v{vL}", [tA], [vL])
        V(f"v_lshrrev_b32 v{tB}, 2, v{tA}", [tB], [tA])
        V(f"v_sub_u32 v{tB}, v{tB}, v{tA}", [tB], [tB, tA])
        V(f"v_and_b32 v{tB}, 3, v{tB}", [tB], [tB])
        V(f"v_lshrrev_b32 v{tC}, 5, v{vL}", [tC], [vL])
        V(f"v_add_u32 v{tB}, v{tB}, v{tC}", [tB], [tB, tC])
        V(f"v_mul_u32_u24 v{tA}, 192, v{tA}", [tA], [tA])
        V(f"v_lshl_add_u32 v{tA}, v{tB}, 4, v{tA}", [tA], [tA, tB])
        V(f"v_add_u32 v{vSt}, s{sStage}, v{tA}", [vSt], [tA])
        for d, j in ((vS4, 4), (vS5, 5)):
            V(f"v_cmp_le_u32 vcc, {12 - 2 * j}, v{tB}", [], [tB], sw=["vcc"])
            V(f"v_add_u32 v{d}, {32 * j}, v{vSt}", [d], [vSt])
            V(f"v_subrev_u32 v{tA}, 192, v{d}", [tA], [d])
            V(f"v_cndmask_b32 v{d}, v{d}, v{tA}, vcc", [d], [d, tA], sr_=["vcc"])
    def tok(j):
        return (vSt, 32 * j) if j < 4 else ((vS4, 0) if j == 4 else (vS5, 0))
    def bias_base():
        V(f"v_bfe_u32 v{tA}, v{vL}, 3, 2", [tA], [vL])
        V(f"v_mul_u32_u24 v{tA}, 24, v{tA}", [tA], [tA])
        V(f"v_and_b32 v{tC}, 7, v{vL}", [tC], [vL])
        V(f"v_add_u32 v{tA}, v{tA}, v{tC}", [tA], [tA, tC])
        V(f"v_lshrrev_b32 v{tB}, 5, v{vL}", [tB], [vL])
        V(f"v_lshlrev_b32 v{tB}, 2, v{tB}", [tB], [tB])
        V(f"v_sub_u32 v{tA}, v{tA}, v{tB}", [tA], [tA, tB])
        V(f"v_lshlrev_b32 v{tA}, 4, v{tA}", [tA], [tA])
        V(f"v_add_u32 v{vB0}, {BIAS + 64}, v{tA}", [vB0], [tA])
        V(f"v_add_u32 v{vB1}, s{sRowAdj}, v{vB0}", [vB1], [vB0])
    def offsets(dst, sWw):
        e.s(f"s_mul_i32 s{sT}, s{sWw}, 1536")
        e.s(f"s_add_u32 s{sT}, s{sT}, 768")
        e.s(f"s_cmp_eq_u32 s{sWw}, 63")
        e.s(f"s_cselect_b32 s{sT}, 0, s{sT}")
        e.s(f"s_add_u32 s{dst}, s{sRow0}, s{sT}")
        e.s(f"s_add_u32 s{dst+1}, s{dst}, {2*ROW}")
        e.s(f"s_add_u32 s{dst+2}, s{sRow1}, s{sT}")
        e.s(f"s_add_u32 s{dst+3}, s{dst+2}, {2*ROW}")
    def xaddr(sWw, t1):
        e.s(f"s_lshl_b32 s{sT}, s{sWw}, 3")
        e.s(f"s_add_u32 s{sT}, s{sT}, 4")
        e.s(f"s_mov_b32 s{sT+1}, {ROW}")
        V(f"v_and_b32 v{vX}, 7, v{vL}", [vX], [vL])
        V(f"v_add_u32 v{vX}, s{sT}, v{vX}", [vX], [vX])
        V(f"v_and_b32 v{vX}, 511, v{vX}", [vX], [vX])
        V(f"v_mul_u32_u24 v{vX}, 192, v{vX}", [vX], [vX])
        V(f"v_bfe_u32 v{t1}, v{vL}, 3, 2", [t1], [vL])
        V(f"v_mad_u32_u24 v{vX}, v{t1}, s{sT+1}, v{vX}", [vX], [t1, vX])
        V(f"v_lshrrev_b32 v{t1}, 5, v{vL}", [t1], [vL])
        V(f"v_lshl_add_u32 v{vX}, v{t1}, 4, v{vX}", [vX], [t1, vX])
    ool = []
    def rare(sreg, kind):
        n = len(ool)
        e.s(f"s_cmp_eq_u32 s{sreg}, 63")
        e.s(f"s_cbranch_scc1 L_ool{n}")
        e.label(f"L_oolr{n}")
        ool.append(kind)
    first = [True]
    def xload(k, so):
        it, i = k // 6, k % 6
        if first[0] and it < cfg.dir0:
            e.bload(Xr(it, i), 4, vX, SX, sRow1 if it else sRow0, 32 * i, cfg.dflags)
            return
        if direct: e.bload(Xr(it, i), 4, vX, SX, sRow1 if it else sRow0, 32 * i, "")
        else: e.bload(Xr(it, i), 4, vG + i % 3, SX, so + 2 * it + (i >= 3), 0, ldflags)
    def xstage(it):
        if first[0] and it < cfg.dir0: return []
        ops = [lambda i=i: e.ds_write(vLin, Xr(it, i), 4, 1024 * i) for i in range(6)]
        ops += [lambda s=s: e.ds_read(Xr(it, s), 4, *tok(s)) for s in range(6)]
        return ops
    def xdma(it, so):
        ops = []
        def one(i):
            e.s(f"s_add_u32 m0, s{sStage}, {1024 * i}")
            e.nop(1)
            e.bload_lds(vG + i % 3, SX, so + 2 * it + (i >= 3), ldflags)
            e.vm[-1] = {f"stage{it}"}
        return [lambda i=i: one(i) for i in range(6)]
    def xread(it):
        def one(s):
            e._waits([f"stage{it}"])
            e.ds_read(Xr(it, s), 4, *tok(s))
        return [lambda s=s: one(s) for s in range(6)]

    e.s("s_cmp_ge_u32 s2, 256")
    e.s("s_cbranch_scc1 L_end")
    e.s("s_load_dwordx8 s[4:11], s[0:1], 0")
    e.s("s_load_dwordx2 s[12:13], s[0:1], 48")
    if cfg.spin:
        e.s("s_memrealtime s[88:89]")
    if cfg.codepf:
        e.s("s_getpc_b64 s[40:41]")
        e.label("L_pc")
        e.raw("    v_lshlrev_b32 v1, 7, v0")
        e.raw("    v_min_u32 v1, L_end-L_pc, v1")
        e.raw("    global_load_dword v239, v1, s[40:41]")
    if cfg.stamps:
        e.s("s_load_dwordx2 s[14:15], s[0:1], 64")
        e.s("s_memtime s[86:87]")
        e.s("s_memrealtime s[88:89]")
        e.raw("    v_mov_b32 v255, 0")
        if cfg.exp_ka:
            stamp(6)
    V(f"v_lshrrev_b32 v{tA}, 6, v0", [tA], [0])
    V(f"v_and_b32 v{vL}, 63, v0", [vL], [0])
    V(f"v_readfirstlane_b32 s{sWave}, v{tA}", [], [tA], sw=[sWave], rl=True)
    V(f"v_lshlrev_b32 v{vWb}, 4, v{vL}", [vWb], [vL])
    e.s(f"s_lshr_b32 s{sWh}, s2, 2")
    e.s(f"s_and_b32 s{sWw0}, s2, 3")
    e.s(f"s_lshl_b32 s{sWw0}, s{sWw0}, 4")
    e.s(f"s_lshl_b32 s{sT}, s{sWh}, 3")
    e.s(f"s_add_u32 s{sRow0}, s{sT}, 4")
    e.s(f"s_mul_i32 s{sRow0}, s{sRow0}, {ROW}")
    if cfg.rot:
        e.s(f"s_and_b32 s{sT+1}, s2, 3")
        e.s(f"s_add_u32 s{sT+2}, s{sWh}, s{sT+1}")
        e.s(f"s_cmp_eq_u32 s{sT+1}, 3")
        e.s(f"s_cselect_b32 s{sT+1}, 1, 3")
        e.s(f"s_and_b32 s{sT+2}, s{sT+2}, s{sT+1}")
        e.s(f"s_lshl_b32 s{sT+2}, s{sT+2}, 2")
        e.s(f"s_add_u32 s{sT+2}, s{sT+2}, s{sWave}")
        e.s(f"s_add_u32 s{sT+1}, s{sT+2}, 8")
        e.s(f"s_and_b32 s{sT+2}, s{sT+2}, 15")
        e.s(f"s_and_b32 s{sT+1}, s{sT+1}, 15")
        e.s(f"s_add_u32 s{sWw1}, s{sWw0}, s{sT+1}")
        e.s(f"s_add_u32 s{sWw0}, s{sWw0}, s{sT+2}")
    else:
        e.s(f"s_add_u32 s{sWw0}, s{sWw0}, s{sWave}")
    gU = 96
    V(f"v_add_u32 v{gU}, 1024, v{vWb}", [gU], [vWb])
    V(f"v_add_u32 v{gU+1}, {ROW-512}, v{vWb}", [gU + 1], [vWb])
    V(f"v_cmp_gt_u32 vcc, 32, v{vL}", [], [vL], sw=["vcc"])
    e.s(f"s_mul_i32 s{sOff}, s{sWw0}, 1536")
    e.s(f"s_add_u32 s{sOff}, s{sOff}, s{sRow0}")
    e.s(f"s_add_u32 s{sOff}, s{sOff}, 768")
    V(f"v_cndmask_b32 v{gU}, v{gU+1}, v{gU}, vcc", [gU], [gU, gU + 1], sr_=["vcc"])
    e.s(f"s_add_u32 s{sOff+1}, s{sOff}, {2*ROW}")
    e.s(f"s_add_u32 s{sOff+2}, s{sOff}, {ROW+512}")
    e.s(f"s_add_u32 s{sOff+3}, s{sOff+1}, {ROW+512}")
    gV = 92
    bA, bP, bR, bG, bL = 80, 88, 89, 90, 91
    for j in range(3):
        V(f"v_add_u32 v{tA}, {64*j}, v{vL}", [tA], [vL])
        V(f"v_mul_u32_u24 v{tB}, 43691, v{tA}", [tB], [tA])
        V(f"v_lshrrev_b32 v{tC}, 19, v{tB}", [tC], [tB])
        V(f"v_mul_u32_u24 v{tC}, 384, v{tC}", [tC], [tC])
        V(f"v_lshl_add_u32 v{gV+j}, v{tA}, 4, v{tC}", [gV + j], [tA, tC])
    V(f"v_and_b32 v{bP}, 0xff, v0", [bP], [0])
    V(f"v_mul_u32_u24 v{bR}, 43691, v{bP}", [bR], [bP])
    V(f"v_lshrrev_b32 v{bR}, 19, v{bR}", [bR], [bR])
    V(f"v_mad_u32_u24 v{bG}, v{bR}, 3, v{bP}", [bG], [bR, bP])
    V(f"v_lshlrev_b32 v{bG}, 3, v{bG}", [bG], [bG])
    sG, sL, sKA, sKB = sT + 4, sT + 5, sT + 9, sT + 10
    e.s(f"s_mul_i32 s{sG}, s{sWave}, 9216")
    e.s(f"s_sub_u32 s{sT+1}, s{sWave}, 6")
    e.s(f"s_mul_i32 s{sT+1}, s{sT+1}, {3*9216}")
    e.s(f"s_add_u32 s{sL}, s{sG}, 6144")
    e.s(f"s_add_u32 s{sG}, s{sG}, 384")
    e.s(f"s_add_u32 s{sT+2}, s{sT+1}, 3072")
    e.s(f"s_add_u32 s{sT+1}, s{sT+1}, 192")
    e.s(f"s_cmp_ge_u32 s{sWave}, 6")
    e.s(f"s_cselect_b32 s{sG}, s{sT+1}, s{sG}")
    e.s(f"s_cselect_b32 s{sL}, s{sT+2}, s{sL}")
    for r, nb in ((SW, 55296), (SR, 1800), (SX, NBYTES)):
        e.s(f"s_mov_b32 s{r+2}, {nb}")
        e.s(f"s_mov_b32 s{r+3}, 0x20000")
    e.s(f"s_mov_b32 m0, s{sL}")
    if cfg.exp_ka: stamp(7)
    e.s("s_waitcnt lgkmcnt(0)")
    stamp(13)
    e.s(f"s_mov_b64 s[{SW}:{SW+1}], s[6:7]")
    e.s(f"s_mov_b64 s[{SX}:{SX+1}], s[4:5]")
    e.s(f"s_mov_b64 s[{SR}:{SR+1}], s[10:11]")
    def blk_dma(sg, last_step=None):
        for j in range(3):
            e.bload_lds(gV + j, SW, sg)
            if j < 2:
                e.s("s_add_u32 m0, m0, 1024")
                e.nop(1)
    if cfg.xfirst:
        e.s(f"s_cmp_ge_u32 s{sWave}, 4")
        e.s("s_cbranch_scc1 L_y0")
        for k in range(6): xload(k, sOff)
        e.label("L_y0")
    blk_dma(sG)
    e.s(f"s_cmp_ge_u32 s{sWave}, 4")
    e.s("s_cbranch_scc1 L_y1")
    e.bload(bA, 4, bG, SR, None, 0)
    e.bload(bA + 4, 4, bG, SR, None, 16)
    for i in range(6):
        e.bload(Xr(0, i), 4, gU if i % 3 == 1 else vWb, SX, sOff + (i >= 3) + (2 if i % 3 == 2 else 0), 0, ldflags)
    stamp(4)
    e.s("s_branch L_iss")
    e.label("L_y1")
    e.s(f"s_cmp_lt_u32 s{sWave}, 6")
    e.s("s_cbranch_scc1 L_iss")
    for i in range(2):
        e.s(f"s_add_u32 m0, m0, {9216 - 2048}")
        e.s(f"s_add_u32 s{sG}, s{sG}, 9216")
        blk_dma(sG)
    e.label("L_iss")
    e.reset()
    for r, p, nb in ((SWO, 8, 18432), (SO, 12, NBYTES)):
        e.s(f"s_mov_b64 s[{r}:{r+1}], s[{p}:{p+1}]")
        e.s(f"s_mov_b32 s{r+2}, {nb}")
        e.s(f"s_mov_b32 s{r+3}, 0x20000")
    V(f"v_mad_u32_u24 v{bL}, v{bR}, 12, v{bP}", [bL], [bR, bP])
    V(f"v_lshlrev_b32 v{bL}, 4, v{bL}", [bL], [bL])
    V(f"v_add_u32 v{bL}, {BIAS}, v{bL}", [bL], [bL])
    e.s(f"s_add_u32 s{sWw1}, s{sWw0}, 8")
    e.s(f"s_lshl_b32 s{sRow1}, s{sWh}, 3")
    e.s(f"s_add_u32 s{sRow1}, s{sRow1}, 8")
    e.s(f"s_and_b32 s{sRow1}, s{sRow1}, 511")
    e.s(f"s_mul_i32 s{sRow1}, s{sRow1}, {ROW}")
    offsets(sOff, sWw0)
    offsets(sOff + 4, sWw1)
    lane_consts()
    e.s(f"s_cmp_eq_u32 s{sWh}, 63")
    e.s(f"s_cselect_b32 s{sRowAdj}, {BMASK}, 0")
    for g in range(3):
        e.s(f"s_mov_b32 s{sVm+2*g}, {0xff << (8*g):#x}")
        e.s(f"s_mov_b32 s{sVm+2*g+1}, {0xff << (8*g):#x}")
    e.s(f"s_mov_b32 s{sRedo}, 0")
    lane_consts2()
    bias_base()
    V(f"v_and_b32 v{tA}, 3, v{vL}", [tA], [vL])
    V(f"v_cmp_eq_u32 vcc, 0, v{tA}", [], [tA], sw=["vcc"])
    V(f"v_mov_b32 v{tB}, 0x3f803f80", [tB])
    V(f"v_cndmask_b32 v{V0}, 0, v{tB}, vcc", [V0], [tB], sr_=["vcc"])
    for r in range(V0 + 1, V0 + 63): V(f"v_mov_b32 v{r}, v{V0}", [r], [V0])
    aTn, aTo, aTv, aW = 100, 101, 102, 105
    u1, u2, u3, u4 = 106, 107, 108, 109
    V(f"v_bfe_u32 v{u1}, v{vL}, 2, 2", [u1], [vL])
    V(f"v_lshrrev_b32 v{u2}, 5, v{vL}", [u2], [vL])
    V(f"v_lshl_add_u32 v{u3}, v{u2}, 3, v{u1}", [u3], [u1, u2])
    V(f"v_mul_u32_u24 v{u4}, 192, v{u3}", [u4], [u3])
    V(f"v_lshl_add_u32 v{u3}, v{u2}, 2, v{u1}", [u3], [u1, u2])
    V(f"v_mul_u32_u24 v{aTo}, 192, v{u3}", [aTo], [u3])
    V(f"v_bfe_u32 v{u1}, v{vL}, 4, 1", [u1], [vL])
    V(f"v_lshl_add_u32 v{aTo}, v{u1}, 5, v{aTo}", [aTo], [aTo, u1])
    V(f"v_and_b32 v{u3}, 1, v{vL}", [u3], [vL])
    V(f"v_lshl_add_u32 v{aTo}, v{u3}, 4, v{aTo}", [aTo], [aTo, u3])
    V(f"v_lshl_add_u32 v{u4}, v{u3}, 3, v{u4}", [u4], [u4, u3])
    V(f"v_bfe_u32 v{u3}, v{vL}, 1, 1", [u3], [vL])
    V(f"v_lshl_add_u32 v{aTo}, v{u3}, 3, v{aTo}", [aTo], [aTo, u3])
    V(f"v_lshl_add_u32 v{u1}, v{u1}, 1, v{u3}", [u1], [u1, u3])
    V(f"v_lshl_add_u32 v{aTn}, v{u1}, 4, v{u4}", [aTn], [u1, u4])
    V(f"v_add_u32 v{u4}, s{sL}, v{u4}", [u4], [u4])
    V(f"v_lshlrev_b32 v{u1}, 3, v{u1}", [u1], [u1])
    for t in range(3):
        tab = [(72 + 8 * t) if g == t else (24 * t + 8 * (g - (g > t))) for g in range(4)]
        word = sum(c << (8 * g) for g, c in enumerate(tab))
        e.s(f"s_mov_b32 s{sT+6}, {word:#x}")
        V(f"v_lshrrev_b32 v{u2}, v{u1}, s{sT+6}", [u2], [u1])
        V(f"v_and_b32 v{u2}, 0xff, v{u2}", [u2], [u2])
        V(f"v_lshl_add_u32 v{aTv+t}, v{u2}, 1, v{u4}", [aTv + t], [u2, u4])
    V(f"v_add_u32 v{aW}, s{sL}, v{vWb}", [aW], [vWb])
    TR = "ds_read_b64_tr_b16"
    FR = 128
    def vstage():
        for t in range(3):
            e.ds_read(FR + 4 * t, 2, aTv + t, 0, op=TR)
            e.ds_read(FR + 4 * t + 2, 2, aTv + t, 4 * 192, op=TR)
        for t in range(3): e.ds_write(aW, FR + 4 * t, 4, t * 1024)
    e.s(f"s_cmp_ge_u32 s{sWave}, 4")
    e.s("s_cbranch_scc1 L_ypre")
    tS = 112
    for i in range(3):
        d = tS + i
        V(f"v_add_u32 v{tA}, {64*i}, v{vL}", [tA], [vL])
        V(f"v_mul_u32_u24 v{tB}, 43691, v{tA}", [tB], [tA])
        V(f"v_lshrrev_b32 v{tB}, 19, v{tB}", [tB], [tB])
        V(f"v_lshrrev_b32 v{tC}, 2, v{tB}", [tC], [tB])
        V(f"v_sub_u32 v{tC}, v{tC}, v{tB}", [tC], [tC, tB])
        V(f"v_and_b32 v{tC}, 3, v{tC}", [tC], [tC])
        V(f"v_add_u32 v{d}, v{tA}, v{tC}", [d], [tA, tC])
        V(f"v_mad_u32_u24 v{tC}, v{tB}, 12, 12", [tC], [tB])
        V(f"v_cmp_ge_u32 vcc, v{d}, v{tC}", [], [d, tC], sw=["vcc"])
        V(f"v_subrev_u32 v{tA}, 12, v{d}", [tA], [d])
        V(f"v_cndmask_b32 v{d}, v{d}, v{tA}, vcc", [d], [d, tA], sr_=["vcc"])
        V(f"v_lshl_add_u32 v{d}, v{d}, 4, s{sStage}", [d], [d])
    if cfg.x1 == 0:
        for k in range(6, 12): xload(k, sOff)
    e.s("s_waitcnt vmcnt(%d)" % ((12 if cfg.x1 == 0 else 6) - (6 if cfg.xfirst else 0)))
    stamp(14)
    if cfg.x1 == 1:
        for k in range(6, 12): xload(k, sOff)
    vstage()
    e.s(f"s_cmp_eq_u32 s{sWave}, 3")
    e.s("s_cbranch_scc1 L_nobias")
    e.s(f"s_mov_b32 s{sT+6}, {f32(LOG2E):#x}")
    e.s(f"s_mov_b32 s{sT+7}, {f32(MASKV):#x}")
    V(f"v_cmp_gt_u32 vcc, 180, v{bP}", [], [bP], sw=["vcc"])
    e.nop(4)
    e.s("s_mov_b64 exec, vcc")
    for h in range(4):
        o = 144 + 8 * h
        for el in range(4):
            src = bA + 2 * (3 - el) + (h >> 1)
            d = o + el
            if h & 1: V(f"v_and_b32 v{d}, 0xffff0000, v{src}", [d], [src])
            else: V(f"v_lshlrev_b32 v{d}, 16, v{src}", [d], [src])
            V(f"v_mul_f32 v{d}, s{sT+6}, v{d}", [d], [d])
            V(f"v_subrev_f32 v{d+4}, s{sT+7}, v{d}", [d + 4], [d])
        off = (h >> 1) * 5760 + (h & 1) * 192
        e.ds_write(bL, o, 4, off)
        e.ds_write(bL, o + 4, 4, off + BMASK)
    e.s("s_mov_b64 exec, -1")
    e.label("L_nobias")
    e.reset()
    stamp(15)
    if cfg.x1 == 2:
        for k in range(6, 12): xload(k, sOff)
    X12 = [set(R(Xr(k // 6, k % 6), 4)) for k in range(12)]
    e.vm = list(X12) if cfg.x1 < 3 else X12[:6]
    if cfg.x1 >= 3:
        e._waits(R(Xr(0, cfg.x1 - 3), 4))
        for k in range(6, 12): xload(k, sOff)
    if cfg.flagB:
        V(f"v_mov_b32 v{tA}, {FLAG}", [tA])
        V(f"v_mov_b32 v{tB}, 0", [tB])
        e.ds_write(tA, tB, 1, 0)
    for i in range(6): e.ds_write(tS + i % 3, Xr(0, i), 4, 3072 * (i >= 3))
    for f in xstage(0)[6:]: f()
    e.wait(lg=0)
    e.s("s_barrier")
    stamp(16)
    e.s("s_branch L_go")
    e.label("L_ypre")
    e.reset()
    e.s("s_waitcnt vmcnt(0)")
    e.s(f"s_cmp_ge_u32 s{sWave}, 6")
    e.s("s_cbranch_scc1 L_ykst")
    vstage()
    e.s("s_branch L_ybar")
    e.label("L_ykst")
    e.reset()
    V(f"v_add_u32 v{u3}, s{sL}, v{aTn}", [u3], [aTn])
    for i in range(9):
        o = (i // 3) * 9216 + 64 * (i % 3)
        e.ds_read(FR + 4 * i, 2, u3, o, op=TR)
        e.ds_read(FR + 4 * i + 2, 2, u3, o + 4 * 192, op=TR)
    for i in range(9): e.ds_write(aW, FR + 4 * i, 4, (i // 3) * 9216 + (i % 3) * 1024)
    e.label("L_ybar")
    e.reset()
    e.s("s_waitcnt lgkmcnt(0)")
    e.s("s_barrier")
    stamp(16)
    e.s(f"s_sub_u32 s{sT}, s{sWave}, 4")
    e.s(f"s_lshl_b32 s{sT}, s{sT}, 1")
    e.s(f"s_min_u32 s{sT}, s{sT}, 5")
    e.s(f"s_mul_i32 s{sKA}, s{sT}, 9216")
    e.s(f"s_mov_b32 m0, s{sKA}")
    e.s(f"s_mov_b32 s{sT+6}, {f32(CSCALE):#x}")
    blk_dma(sKA)
    def qstage(sb):
        V(f"v_add_u32 v{u3}, s{sb}, v{aTn}", [u3], [aTn])
        V(f"v_add_u32 v{aW}, s{sb}, v{vWb}", [aW], [vWb])
        for T in range(3):
            e.ds_read(FR + 4 * T, 2, u3, 64 * T, op=TR)
            e.ds_read(FR + 4 * T + 2, 2, u3, 64 * T + 4 * 192, op=TR)
        for r in range(FR, FR + 12):
            V(f"v_lshlrev_b32 v{u1}, 16, v{r}", [u1], [r])
            V(f"v_and_b32 v{u2}, 0xffff0000, v{r}", [u2], [r])
            V(f"v_mul_f32 v{u1}, s{sT+6}, v{u1}", [u1], [u1])
            V(f"v_mul_f32 v{u2}, s{sT+6}, v{u2}", [u2], [u2])
            e.cvt(r, u1, u2)
            if r % 4 == 3: e.ds_write(aW, r - 3, 4, ((r - FR) // 4) * 1024)
    e.s(f"s_cmp_ge_u32 s{sWave}, 6")
    e.s("s_cbranch_scc1 L_ywo")
    e.s(f"s_add_u32 s{sKB}, s{sKA}, 9216")
    e.s(f"s_mov_b32 m0, s{sKB}")
    e.nop(1)
    blk_dma(sKB)
    ny = 6 if cfg.yx == "postA" else 0
    for k in range(ny): xload(k, sOff)
    e.s(f"s_waitcnt vmcnt({3 + ny})")
    qstage(sKA)
    e.s(f"s_waitcnt vmcnt({ny})")
    qstage(sKB)
    e.s("s_branch L_ydone")
    e.label("L_ywo")
    e.reset()
    e.s(f"s_sub_u32 s{sT}, s{sWave}, 6")
    e.s(f"s_mul_i32 s{sKB}, s{sT}, 9216")
    e.s(f"s_add_u32 m0, s{sKB}, {WOB}")
    e.s(f"s_mov_b32 s{sT+1}, s{sKB}")
    for j in range(9):
        e.bload_lds(vWb, SWO, sT + 1)
        if j < 8:
            e.s("s_add_u32 m0, m0, 1024")
            e.s(f"s_add_u32 s{sT+1}, s{sT+1}, 1024")
    for k in range(ny): xload(k, sOff)
    e.s(f"s_waitcnt vmcnt({9 + ny})")
    qstage(sKA)
    e.s(f"s_add_u32 s{sT}, s{sKB}, {WOB}")
    V(f"v_add_u32 v{u3}, s{sT}, v{aTo}", [u3], [aTo])
    V(f"v_add_u32 v{u4}, s{sT}, v{vWb}", [u4], [vWb])
    e.s(f"s_waitcnt vmcnt({ny})")
    F2 = 48
    for i in range(9):
        e.ds_read(F2 + 4 * i, 2, u3, (i // 3) * 3072 + 64 * (i % 3), op=TR)
        e.ds_read(F2 + 4 * i + 2, 2, u3, (i // 3) * 3072 + 64 * (i % 3) + 8 * 192, op=TR)
    for i in range(9): e.ds_write(u4, F2 + 4 * i, 4, i * 1024)
    e.label("L_ydone")
    e.reset()
    if cfg.yx == "preB":
        for k in range(12): xload(k, sOff)
    if cfg.yx == "postA":
        e.vm = X12[:6]
        for k in range(6, 12): xload(k, sOff)
        for f in xstage(0): f()
    e.s("s_waitcnt lgkmcnt(0)")
    if cfg.flagB:
        V(f"v_mov_b32 v{tA}, {FLAG}", [tA])
        V(f"v_mov_b32 v{tB}, 1", [tB])
        e.s("s_mov_b64 exec, 1")
        e.s(f"ds_add_u32 v{tA}, v{tB}")
        e.lg.append(set())
        e.s("s_mov_b64 exec, -1")
    else:
        e.s("s_barrier")
    stamp(15)
    if cfg.solo: e.s("s_branch L_fin")
    if cfg.yx == "postB":
        for k in range(12): xload(k, sOff)
    if cfg.yx != "postA":
        for f in xstage(0): f()
        e.wait(lg=0)
    e.label("L_go")
    e.reset()
    V(f"v_mov_b32 v{V0+63}, v{V0}", [V0 + 63], [V0])
    e.vm = X12[6:] if not cfg.dir0 else list(X12)

    WB = [96, 100, 120, 124]
    chains = [("V", 0), ("V", 1), ("V", 2), ("K", 0), ("K", 1), ("K", 2), ("Q", 0), ("Q", 1), ("Q", 2)]
    tile_of = {"Q": 0, "K": 3, "V": 6}
    A0, A1 = (T0, T1), (80, 104)
    accs = [A1, A0, A1, A0, A1, A0, A1, A0, A0]
    frags = [(c, s) for c in range(len(chains)) for s in range(6)]
    OA = T1
    TORD = [(0, 1), (0, 0), (1, 1), (1, 0)] if cfg.diag else [(0, 0), (0, 1), (1, 0), (1, 1)]
    def tile(n): return (n >> 2,) + TORD[n & 3]
    ring = {}
    def wread(n):
        if n < len(frags) and not (cfg.exp_now and n % 36 > 3):
            c, s = frags[n]
            kind, t = chains[c]
            e.ds_read(WB[n % 4], 4, vWb, s * SBQ + (tile_of[kind] + t) * 1024)
    def cvts_of(c, only=None):
        kind, t = chains[c]
        out = []
        for it in range(2):
            a = accs[c][it]
            if only:
                if it != only[0]: continue
                a = only[1]
            if kind == "V":
                for k0 in range(0, 8, cfg.vg):
                    g = [lambda: e.s(f"s_mov_b64 exec, s[{sVm+2*t}:{sVm+2*t+1}]")]
                    if not cfg.exp_nocv: g += [lambda k=k, a=a, it=it: e.cvt(Vr(3, 8 * it + k), a + 2 * k, a + 2 * k + 1) for k in range(k0, k0 + cfg.vg)]
                    g += [lambda: e.s("s_not_b64 exec, exec")]
                    g += [lambda k=k, a=a, it=it: e.cvt(Vr(t, 8 * it + k), a + 2 * k, a + 2 * k + 1) for k in range(k0, k0 + cfg.vg)]
                    g += [lambda: e.s("s_mov_b64 exec, -1")]
                    out.append(g)
            else:
                for k0 in range(0, 8, cfg.gsz):
                    g = []
                    for k in range(k0, k0 + cfg.gsz):
                        p = 8 * t + k
                        d = Qr(it, p) if kind == "Q" else Kr(p // 6, it, p % 6)
                        g.append(lambda d=d, k=k, a=a: e.cvt(d, a + 2 * k, a + 2 * k + 1))
                    out.append(g)
        return out
    def bias_read(n, q):
        if cfg.exp_nobias: return
        h, it, jt = tile(n)
        dl = it - jt
        off = (((h >> 1) * 15 + (4 * dl - q + 7)) * 24 + (h & 1) * 12) * 16
        e.ds_read(ring[n] + 4 * q, 4, vB0 if dl == 0 else vB1, off)
    def dense(extra=(), pre=True, c0=0, pend=()):
        extra = list(extra)
        pend = list(pend)
        if pre:
            for n in range(3): wread(6 * c0 + n)
        for c, (kind, t) in enumerate(chains):
            if c < c0: continue
            if c == 1: assert not any(getattr(f, "valu", False) for f in extra)
            if c == cfg.p1chain:
                if nob[0]: rushprio(1)
                else: prio(1)
            last = c == len(chains) - 1
            if last:
                boosted([f for g in pend for f in g])
                pend = []
            for s in range(6):
                n = 6 * c + s
                w = WB[n % 4]
                for it in range(2):
                    D = accs[c][it]
                    A, B = (Xr(it, s), w) if kind == "V" else (w, Xr(it, s))
                    if not (cfg.exp_nod and s == 3): e.mfma(D, A, B, 0 if s == 0 else None)
                    if c0 == 3 and it == 0 and n + 3 == 36: barB()
                    if it == 0: wread(n + 3)
                    if last and it == 0 and s == 4:
                        for q in range(4): bias_read(0, q)
                    slot = 2 * s + it
                    pace(cfg.sgapD)
                    if slot >= 2 and pend and (len(pend) > (11 - slot) // 2 + 0 or it == 1):
                        boosted(pend.pop(0))
                    elif extra: popn(extra, 2)
            assert not pend
            if c == 3: flush()
            pend = cvts_of(c)
        assert not extra
        return [f for g in pend for f in g]
    def flag_read():
        V(f"v_mov_b32 v{vX}, {FLAG}", [vX])
        e.ds_read(vRc, 1, vX, 0)
    def barB():
        if cfg.flagB:
            V(f"v_readfirstlane_b32 s{sT}, v{vRc}", [], [vRc], sw=[sT], rl=True)
            e.nop(2)
            e.s(f"s_cmp_lt_u32 s{sT}, 4")
            e.s("s_cbranch_scc1 L_poll")
            e.label("L_pollr")
            return
        e.s(f"s_cmp_ge_u32 s{sWave}, 4")
        e.s("s_cbranch_scc1 L_nobarB")
        e.s("s_barrier")
        e.t -= 1
        e.label("L_nobarB")
    def dense_first():
        NS = cfg.nsingle
        WI = [104, 108, 112, 116, 80, 84, 88, 92]
        fr = [(it, c, s) for it in range(2) for c in range(NS) for s in range(6)]
        def rd(n):
            if n < len(fr) and not (cfg.exp_now and n > 3):
                it, c, s = fr[n]
                kind, t = chains[c]
                e.ds_read(WI[n % 8], 4, vWb, s * SBQ + (tile_of[kind] + t) * 1024)
        for n in range(cfg.deep): rd(n)
        pend, extra = [], []
        for ci in range(2 * NS):
            it, c = ci // NS, ci % NS
            D = [T1, T0][ci % 2]
            if ci == 2 * cfg.p1chain: prio(1)
            if ci == NS - 1:
                stamp(5)
                extra = xstage(1)
            if ci == NS: stamp(6)
            if ci == 2 * NS - 1: stamp(7)
            if cfg.xmix and ci == cfg.xmixci:
                e._waits(R(24, 24))
                extra = [lambda: rare(sWw1, "wrap+")] + xdma(1, sOff + 4) + [lambda: rare(sWw1, "wrap-")]
            for s in range(6):
                n = 6 * ci + s
                w = WI[n % 8]
                A, B = (Xr(it, s), w) if c < 3 else (w, Xr(it, s))
                if not (cfg.exp_nod and s == 3): e.mfma(D, A, B, 0 if s == 0 else None)
                rd(n + cfg.deep)
                if extra:
                    for _ in range(2):
                        if extra: extra.pop(0)()
                if s >= 2 and pend: boosted(pend.pop(0))
                if ci == 2 * NS - 1:
                    if s == 0 and cfg.flagB: flag_read()
                    if s == 2 and NS == 6: barB()
                    if s >= 3: wread(6 * NS + s - 3)
            assert not pend and not extra
            pend = cvts_of(c, (it, D))
        stamp(8)
        if NS == 3:
            for g in pend: boosted(g)
            pend = []
        return pend
    def S_mfma(n, part, cfrom=None):
        h, it, jt = tile(n)
        if part == 0: e.mfma(ring[n], Kr(h, jt, 0), Qr(it, 6 * h), 0 if cfg.exp_nobias else None if cfrom is None else ("c", ring[cfrom]))
        elif not cfg.exp_nok8: e.mfma(ring[n], Kr(h, jt, 4), Qr(it, 6 * h + 4), None, k8=True)
    def PV_mfma(n, kk):
        h, it, jt = tile(n)
        e.mfma(OA, Vr(h, 8 * jt + 4 * kk), ring[n] + 4 * kk, 0 if (n % 2 == 0 and kk == 0) else None)
    def norm(u, check=True):
        h, it = u >> 1, u & 1
        regs = [OA + r for r in range(16) if r >> 2 != h]
        l = OA + 4 * h
        ops = [lambda: e.rcp(vRc, l)]
        if not cfg.exp_nomul: ops += [lambda r=r: e.mul(r, r, vRc) for r in regs]
        if check:
            if u == 0: ops.append(lambda: V(f"v_max_f32_e64 v{vChk}, v{l}, v{vRc}", [vChk], [l, vRc]))
            else: ops.append(lambda: V(f"v_max3_f32 v{vChk}, v{vChk}, v{l}, v{vRc}", [vChk], [vChk, l, vRc]))
        ops += [lambda k=k: e.cvt(Qr(it, 6 * h + k), regs[2 * k], regs[2 * k + 1]) for k in range(6)]
        return ops
    def attention(lastc, hooks):
        if not cfg.diag:
            for q in range(4): bias_read(1, q)
        else:
            for q in range(4): bias_read(1, q)
        S_mfma(0, 0)
        for f in lastc[:4]: f()
        S_mfma(0, 1)
        for f in lastc[4:]: f()
        for n in range(17):
            va = []
            if n < 16:
                slot = ring[n]
                for k in range(8):
                    va.append(lambda k=k: e.exp(slot + 2 * k, slot + 2 * k))
                    if not cfg.exp_noexp: va.append(lambda k=k: e.exp(slot + 2 * k + 1, slot + 2 * k + 1))
                    if k >= 1: va.append(lambda k=k: e.cvt(slot + k - 1, slot + 2 * k - 2, slot + 2 * k - 1))
                va.append(lambda: e.cvt(slot + 7, slot + 14, slot + 15))
            nrm = norm((n - 1) >> 1) if (n >= 2 and n % 2 == 0) else []
            pv, sm = [], []
            if n >= 1: pv = [lambda: PV_mfma(n - 1, 0), lambda: PV_mfma(n - 1, 1)]
            ds = []
            if n + 1 < 16:
                if cfg.diag and n % 4 == 0:
                    sm = [lambda: S_mfma(n + 2, 0, cfrom=n + 1), lambda: S_mfma(n + 1, 0), lambda: S_mfma(n + 1, 1)]
                elif cfg.diag and n % 4 == 1:
                    sm = [lambda: S_mfma(n + 1, 1)]
                else:
                    sm = [lambda: S_mfma(n + 1, 0), lambda: S_mfma(n + 1, 1)]
            if cfg.mord == 0: mf = pv + sm
            elif cfg.mord == 1: mf = sm + pv
            elif cfg.mord == 2:
                mf = []
                a, b = list(pv), list(sm)
                while a or b:
                    if a: mf.append(a.pop(0))
                    if b: mf.append(b.pop(0))
            else:
                mf = []
                a, b = list(sm), list(pv)
                while a or b:
                    if a: mf.append(a.pop(0))
                    if b: mf.append(b.pop(0))
            if n + 2 < 16 and not (cfg.diag and n % 4 == 0):
                ds = [lambda q=q: bias_read(n + 2, q) for q in range(4)]
            ds += hooks.get(n, [])
            g = cfg.mgap
            pos = {5: [(g - 1) * i for i in range(5)], 4: [g * i for i in range(4)], 3: [(g + 1) * i for i in range(3)], 2: [0, g + 1]}[len(mf)]
            if g <= 3: pos = [g * i for i in range(len(mf))]
            if n == 0: pos = [3, 8, 13][:len(mf)]
            seq = va + nrm
            if va and nrm: seq = va[:-1] + nrm[:1] + va[-1:] + nrm[1:]
            per = -(-len(ds) // len(mf))
            mi = 0
            for i in range(len(seq) + 1):
                while mi < len(mf) and (pos[mi] <= i or i == len(va)):
                    mf[mi](); mi += 1
                    if n == 16 and mi == 1: continue
                    for _ in range(len(ds) if n == 16 else per):
                        if ds: ds.pop(0)()
                if i < len(seq): seq[i]()
            assert not ds
    def check(bit):
        V(f"v_cmp_ngt_f32 vcc, {f32(cfg.thr):#x}, v{vChk}", [], [vChk], sw=["vcc"])
        return [lambda: e.s("s_cmp_lg_u64 vcc, 0"),
                lambda: e.s(f"s_cselect_b32 s{sT+2}, {bit}, 0"),
                lambda: e.s(f"s_or_b32 s{sRedo}, s{sRedo}, s{sT+2}")]
    YW = [160, 164, 168, 172, 64, 68, 72, 76]
    YA = [128, 144, T0, 128, 144, T0]
    yfr = [(it, t, s) for it in range(2) for t in range(3) for s in range(6)]
    LIN = [[80, 84, 88, 92, 96, 100], [128, 132, 136, 140, 160, 164]]
    def yread(n):
        if n < len(yfr) and not (cfg.exp_now and n > 3):
            it, t, s = yfr[n]
            e.ds_read(YW[n % 8], 4, vWo, s * 3072 + t * 1024)
    def popn(q, n, valu=True):
        for _ in range(n):
            if not q or (not valu and getattr(q[0], "valu", False)): return
            f = q.pop(0); f()
            if getattr(f, "valu", False): return
    nst = [0]
    stq, sclk = [], [0]
    def pace(gap):
        sclk[0] += 1
        if stq and sclk[0] >= gap:
            stq.pop(0)(); sclk[0] = 0
    def flush():
        while stq: stq.pop(0)()
    def ystore(it, i, so):
        nst[0] += 1
        if cfg.exp_nost == 1 or (cfg.exp_nost == 2 and nst[0] > 12) or (cfg.exp_nost == 3 and nst[0] <= 12): return
        e.bstore(LIN[it][i], 4, vG + i % 3, SO, so + 2 * it + (i >= 3), 0, cfg.stflags0 if nst[0] <= 12 else cfg.stflagsL if 18 < nst[0] <= 24 else cfg.stflags)
    def ytail(c, so):
        it, t = c // 3, c % 3
        a = YA[c]
        cv = [lambda k=k: e.cvt(a + k, a + 2 * k, a + 2 * k + 1) for k in range(8)]
        ops = [lambda: boosted(cv[:4]), lambda: e.ds_write(tok(2 * t)[0], a, 4, tok(2 * t)[1]),
               lambda: boosted(cv[4:]), lambda: e.ds_write(tok(2 * t + 1)[0], a + 4, 4, tok(2 * t + 1)[1])]
        ops[0].valu = ops[2].valu = True
        if cfg.exp_noy:
            nst[0] += 6 * (t == 2)
            return [ops[0], ops[2]]
        if t == 2:
            ops += [lambda i=i: e.ds_read(LIN[it][i], 4, vLin, 1024 * i) for i in range(6)]
            ops += [lambda: stq.extend([lambda i=i: ystore(it, i, so) for i in (cfg.sord if it == 0 else range(6))])]
        return ops
    def outproj(so, first=(), mid=(), post=()):
        V(f"v_add_u32 v{vWo}, {WOB}, v{vWb}", [vWo], [vWb])
        for n in range(cfg.deep): yread(n)
        todo = list(first)
        post = list(post)
        held = []
        for c in range(6):
            for s in range(6):
                n = 6 * c + s
                e.mfma(YA[c], YW[n % 8], Qr(c // 3, 4 * s), 0 if s == 0 else None)
                yread(n + cfg.deep)
                pace(cfg.sgapY)
                if c == 5 and s >= 3 and post:
                    assert nst[0] % 12 >= 2, nst
                    post.pop(0)()
                if s >= 2 or c in (0, 4, 5):
                    popn(todo, 2 if c in (1, 2) else 4 if (c == 0 or len(mid) > 12) else 3)
            t = ytail(c, so)
            if mid and 3 <= c <= cfg.midc:
                held += [t[1], t[3]]; t = [t[0], t[2]] + t[4:]
            if mid and c == cfg.midc:
                if c == 2: t = t[:10] + list(mid) + t[10:]
                else: t = t[:2] + list(mid) + held + t[2:]
            todo += t
        assert not post
        while any(f in mid for f in todo): todo.pop(0)()
        flush()
        return todo

    YF = [4 * f for f in range(12)] + [160, 164, 168, 172, 64, 68]
    def yfread(f): e.ds_read(YF[f], 4, vWo, (f % 6) * 3072 + (f // 6) * 1024)
    def outproj_last(so, first):
        LIN[1][:] = [104, 108, 112, 116, 120, 124]
        for f in (16, 17): yfread(f)
        todo = list(first)
        pA, pA2, pG = vChk, vX, vRc
        def paddr():
            t1, t2 = 72, 73
            V(f"v_lshrrev_b32 v{t1}, 2, v{vL}", [t1], [vL])
            V(f"v_lshrrev_b32 v{t2}, 4, v{vL}", [t2], [vL])
            V(f"v_sub_u32 v{t2}, v{t2}, v{t1}", [t2], [t1, t2])
            V(f"v_and_b32 v{t2}, 3, v{t2}", [t2], [t2])
            V(f"v_and_b32 v{pG}, 3, v{vL}", [pG], [vL])
            V(f"v_add_u32 v{t2}, v{t2}, v{pG}", [t2], [t2, pG])
            V(f"v_mul_u32_u24 v{pA}, 192, v{t1}", [pA], [t1])
            V(f"v_lshl_add_u32 v{pG}, v{pG}, 4, v{pA}", [pG], [pG, pA])
            V(f"v_lshl_add_u32 v{pA}, v{t2}, 4, v{pA}", [pA], [t2, pA])
            V(f"v_add_u32 v{pA}, s{sStage}, v{pA}", [pA], [pA])
            V(f"v_cmp_le_u32 vcc, 4, v{t2}", [], [t2], sw=["vcc"])
            V(f"v_add_u32 v{pA2}, 128, v{pA}", [pA2], [pA])
            V(f"v_subrev_u32 v{t2}, 64, v{pA}", [t2], [pA])
            V(f"v_cndmask_b32 v{pA2}, v{pA2}, v{t2}, vcc", [pA2], [pA2, t2], sr_=["vcc"])
            e.s(f"s_mov_b32 s{sT}, {ROW - 8 * 192}")
            V(f"v_lshrrev_b32 v{t1}, 5, v{vL}", [t1], [vL])
            V(f"v_mad_u32_u24 v{pG}, v{t1}, s{sT}, v{pG}", [pG], [t1, pG])
            rare(sWw1, "wrapP")
        paddr.valu = True
        if cfg.piece: todo.append(paddr)
        def ptail(c):
            t = c - 3
            ops = ytail(c, so)[:4]
            r = 8 * t
            a, o = (pA, 64 * t) if t < 2 else (pA2, 0)
            ops += [lambda j=j: e.ds_read(r + 4 * j, 4, a, o + 3072 * j) for j in range(2)]
            ops += [lambda: stq.extend([lambda j=j: e.bstore(r + 4 * j, 4, pG, SO, so + 2 + j, 64 * t, cfg.stflagsL) for j in range(2)])]
            return ops
        for c in range(6):
            for s in range(6):
                e.mfma(YA[c], YF[6 * (c % 3) + s], Qr(c // 3, 4 * s), 0 if s == 0 else None)
                t0 = e.t
                pace(cfg.sgapY)
                popn(todo, 2 if c < 3 else 3, valu=(s >= 2 or c == 0))
                if c and s < 2 and e.t - t0 < 4: e.nop(4 - (e.t - t0))
            todo += ptail(c) if (cfg.piece and c >= 3) else ytail(c, so)
        flush()
        for f in todo: f()
        flush()
        nst[0] = 24
        LIN[1][:] = [128, 132, 136, 140, 160, 164]
    prio(0)
    stamp(0)
    for n in range(16): ring[n] = [0, 16, 32, T0][n % 4]
    ring[8] = ring[12] = 128
    ring[13] = 144
    lastc = dense(c0=cfg.nsingle, pend=dense_first(), pre=False)
    first[0] = False
    stamp(1)
    prio(2)
    def wrapped(fs): return [lambda: rare(sWw1, "wrap+")] + fs + [lambda: rare(sWw1, "wrap-")]
    if cfg.xmix:
        grp = lambda ks: wrapped([lambda k=k: xload(k, sOff + 4) for k in ks])
        hooks = {6: grp(range(0, 4)), 11: grp(range(4, 6))}
    elif cfg.xdma:
        hooks = {cfg.d0: wrapped(xdma(0, sOff + 4)), 11: xread(0),
                 12: wrapped([lambda: e._waits(R(0, 24))] + xdma(1, sOff + 4))}
    else:
        grp = lambda ks: wrapped([lambda k=k: xload(k, sOff + 4) for k in ks])
        hooks = {6: grp(range(0, 4)), 11: grp(range(4, 8)), 16: grp(range(8, 12))}
        if cfg.xlate == 1: hooks = {16: grp(range(0, 12))}
        if cfg.xiny: hooks = {}
        if cfg.xlate == 2: hooks = {11: grp(range(0, 8)), 16: grp(range(8, 12))}
        if cfg.xlate == 3: hooks = {14: grp(range(0, 8)), 16: grp(range(8, 12))}
    if cfg.otouch >= 0:
        def touch():
            e.s(f"s_mov_b32 s{sT}, {ROW}")
            V(f"v_and_b32 v{vX}, 3, v{vL}", [vX], [vL])
            V(f"v_mul_lo_u32 v{vX}, v{vX}, s{sT}", [vX], [vX])
            e.bload(vWo, 1, vX, SO, sOff, 0)
            e.bload(vX, 1, vX, SO, sOff + 2, 0)
        hooks[cfg.otouch] = [touch]
    attention(lastc, hooks)
    ck = check(1)
    stamp(2)
    if cfg.rush == 1:
        nob[0] = True
        rushprio(0)
    else: prio(cfg.yprio)
    late = cfg.xlate in (1, 3)
    if cfg.xiny: ck = ck + grp(range(0, 12))
    tail = outproj(sOff, first=ck + (xread(1) + xstage(0) if cfg.xmix else xread(1) if cfg.xdma else [] if late else xstage(0)),
                   mid=([] if (cfg.xdma or cfg.xmix) else xstage(0) + xstage(1) if late else xstage(1)),
                   post=[lambda n=n: wread(n) for n in range(3)])
    stamp(3)
    if cfg.yprio and not cfg.lowatt: prio(0)
    if cfg.rush == 2:
        nob[0] = True
        rushprio(0)
    rare(sWw1, "colmask")
    lastc = dense(extra=tail, pre=False)
    stamp(9)
    if cfg.wbl2:
        e.s(f"s_and_b32 s{sT}, s{sWave}, 3")
        e.s(f"s_lshl_b32 s{sT}, s{sT}, 10")
        e.s(f"s_add_u32 s{sT}, s{sT}, s2")
        e.s(f"s_cmp_ge_u32 s{sT}, {cfg.wbl2}")
        e.s("s_cbranch_scc1 L_nowb")
        e.s("buffer_wbl2 sc1")
        e.t -= 1
        e.label("L_nowb")
    nob[0] = False
    prio(2)
    hk = {}
    if cfg.lowatt:
        e.s(f"s_cmp_ge_u32 s{sWave}, 4")
        e.s("s_cbranch_scc1 L_lowa")
        e.s("s_setprio 0")
        e.label("L_lowa")
        hk = {cfg.lowatt: [lambda: e.s("s_setprio 2")]}
    if cfg.ypre:
        yf = lambda fs: [lambda f=f: yfread(f) for f in fs]
        hk[7] = [lambda: V(f"v_add_u32 v{vWo}, {WOB}, v{vWb}", [vWo], [vWb])]
        hk[8] = yf(range(0, 4)); hk[12] = yf(range(4, 8)); hk[15] = yf(range(12, 16)); hk[16] = yf(range(8, 12))
    attention(lastc, hk)
    ck = check(2)
    stamp(10)
    prio(0)
    rare(sWw1, "wrap+")
    if cfg.ypre: outproj_last(sOff + 4, ck)
    else:
        tail = outproj(sOff + 4, first=ck)
        stamp(11)
        for f in tail: f()
        flush()
    stamp(12)
    e.s(f"s_cmp_lg_u32 s{sRedo}, 0")
    e.s("s_cbranch_scc1 L_redo")
    e.label("L_fin")
    if cfg.spin:
        e.s("s_waitcnt vmcnt(0)")
        if cfg.gspin:
            e.raw("    v_mov_b32 v3, 0")
            e.raw("    global_load_dword v2, v3, s[14:15] sc0 sc1")
            e.raw("    s_waitcnt vmcnt(0)")
            e.raw("    v_readfirstlane_b32 s88, v2")
            e.nop(4)
            e.s("s_not_b32 s88, s88")
        if cfg.mile >= 0:
            e.s("s_sub_u32 s92, s92, s88")
            e.s("s_lshl_b32 s92, s92, 2")
            if cfg.milew:
                e.s(f"s_cmp_lt_u32 s{sWave}, 4" if cfg.milew == 1 else f"s_cmp_ge_u32 s{sWave}, 4")
                e.s("s_cselect_b32 s92, s92, 0")
            e.s("s_min_u32 s92, s92, 20000")
            e.s("s_add_u32 s88, s88, s92")
        e.label("L_spin")
        e.s("s_memrealtime s[90:91]")
        e.s("s_waitcnt lgkmcnt(0)")
        e.s("s_sub_u32 s90, s90, s88")
        e.s(f"s_cmp_lt_i32 s90, {cfg.spin}")
        e.s("s_cbranch_scc1 L_spin")
    if cfg.stamps:
        e.s("s_waitcnt vmcnt(0)")
        stamp(17)
        e.raw("    v_writelane_b32 v255, s86, 20")
        e.raw("    v_writelane_b32 v255, s88, 21")
        e.raw("    v_writelane_b32 v255, s94, 22")
        e.s("s_mov_b32 s16, s14"); e.s("s_mov_b32 s17, s15"); e.s("s_mov_b32 s18, 0x100000"); e.s("s_mov_b32 s19, 0x20000")
        e.s(f"s_lshl_b32 s92, s2, 3"); e.s(f"s_add_u32 s92, s92, s{sWave}"); e.s("s_lshl_b32 s92, s92, 8")
        e.raw(f"    v_lshrrev_b32 v254, 2, v{vWb}")
        e.nop(2)
        e.raw("    buffer_store_dword v255, v254, s[16:19], s92 offen")
    e.label("L_end")
    e.s("s_endpgm")

    def wrapcode(sign):
        a, b = (97536, -768) if sign > 0 else (-97536, 768)
        for i, (lo, hi) in enumerate(((0, 0xffff0000), (0xffffffff, 0), (0xffff0000, 0xffffffff))):
            e.s(f"s_mov_b32 exec_lo, {lo:#x}")
            e.s(f"s_mov_b32 exec_hi, {hi:#x}")
            e.raw(f"    v_add_u32 v{vG+i}, {b & 0xffffffff:#x}, v{vG+i}")
            e.s("s_not_b64 exec, exec")
            e.raw(f"    v_add_u32 v{vG+i}, {a & 0xffffffff:#x}, v{vG+i}")
        e.s("s_mov_b64 exec, -1")
    def colmask():
        e.s("s_mov_b32 exec_lo, 0xf0f0f0f0")
        e.s("s_mov_b32 exec_hi, 0x0f0f0f0f")
        e.raw(f"    v_add_u32 v{vB0}, {BMASK}, v{vB0}")
        e.raw(f"    v_mov_b32 v{vB1}, v{vB0}")
        e.s("s_mov_b64 exec, -1")
    def emit_ool(first):
        for n in range(first, len(ool)):
            e.label(f"L_ool{n}")
            if ool[n] == "wrap+": wrapcode(+1)
            elif ool[n] == "wrap-": wrapcode(-1)
            elif ool[n] == "colmask": colmask()
            elif ool[n] == "wrapP":
                e.s("s_mov_b32 exec_lo, 0xffff0000")
                e.s("s_mov_b32 exec_hi, 0xffff0000")
                e.raw(f"    v_add_u32 v{vRc}, {(-768) & 0xffffffff:#x}, v{vRc}")
                e.s("s_not_b64 exec, exec")
                e.raw(f"    v_add_u32 v{vRc}, 97536, v{vRc}")
                e.s("s_mov_b64 exec, -1")
            else: wrapcode(+1); colmask()
            e.s(f"s_branch L_oolr{n}")
    emit_ool(0)
    if cfg.flagB:
        e.label("L_poll")
        e.s(f"ds_read_b32 v{vRc}, v{vX}")
        e.s("s_waitcnt lgkmcnt(0)")
        e.s(f"v_readfirstlane_b32 s{sT}, v{vRc}")
        e.s("s_nop 3")
        e.s(f"s_cmp_lt_u32 s{sT}, 4")
        e.s("s_cbranch_scc1 L_poll")
        e.s("s_branch L_pollr")
    nool = len(ool)
    e.label("L_redo")
    e.reset()
    e.s("s_waitcnt vmcnt(0) lgkmcnt(0)")
    e.nop(16)
    e.s(f"s_ff1_i32_b32 s{sCurE}, s{sRedo}")
    e.s(f"s_lshl_b32 s{sT}, 1, s{sCurE}")
    e.s(f"s_andn2_b32 s{sRedo}, s{sRedo}, s{sT}")
    e.s(f"s_cmp_eq_u32 s{sCurE}, 0")
    e.s(f"s_cselect_b32 s{sWwC}, s{sWw0}, s{sWw1}")
    offsets(sOff, sWwC)
    lane_consts()
    bias_base()
    if direct: xaddr(sWwC, tA)
    rare(sWwC, "both")
    for k in range(12): xload(k, sOff)
    if not direct:
        for it in range(2):
            for f in xstage(it): f()
    for n in range(16): ring[n] = [0, 16][n % 2]
    lastc = dense()
    for f in lastc: f()
    m, m2 = vChk, vWo
    for u in range(8):
        for j in range(2):
            for q in range(4): bias_read(2 * u + j, q)
        for j in range(2):
            S_mfma(2 * u + j, 0); S_mfma(2 * u + j, 1)
        V(f"v_max_f32 v{m}, v0, v1", [m], [0, 1])
        for k in range(1, 16):
            V(f"v_max3_f32 v{m}, v{m}, v{2*k}, v{2*k+1}", [m], [m, 2 * k, 2 * k + 1])
        V(f"v_mov_b32 v{m2}, v{m}", [m2], [m])
        V(f"v_permlane32_swap_b32 v{m}, v{m2}", [m, m2], [m, m2], perm=True)
        e.nop(2)
        V(f"v_max_f32 v{m}, v{m}, v{m2}", [m], [m, m2])
        for k in range(32): V(f"v_sub_f32 v{k}, v{k}, v{m}", [k], [k, m])
        for k in range(32): e.exp(k, k)
        for j in range(2):
            for k in range(8): e.cvt(16 * j + k, 16 * j + 2 * k, 16 * j + 2 * k + 1)
        for j in range(2):
            PV_mfma(2 * u + j, 0); PV_mfma(2 * u + j, 1)
        for f in norm(u, check=False): f()
    for f in outproj(sOff): f()
    flush()
    e.s(f"s_cmp_lg_u32 s{sRedo}, 0")
    e.s("s_cbranch_scc1 L_redo")
    e.s("s_branch L_fin")
    emit_ool(nool)
    e.raw('.section .rodata,"a"')
    e.raw(".p2align 6")
    e.raw(f".amdhsa_kernel {NAME}_kernel")
    e.raw("  .amdhsa_next_free_vgpr 256")
    e.raw("  .amdhsa_next_free_sgpr 96")
    e.raw("  .amdhsa_accum_offset 256")
    e.raw("  .amdhsa_group_segment_fixed_size 0")
    e.raw("  .amdhsa_kernarg_size 72")
    e.raw("  .amdhsa_user_sgpr_count 2")
    e.raw("  .amdhsa_user_sgpr_kernarg_segment_ptr 1")
    e.raw("  .amdhsa_system_sgpr_workgroup_id_x 1")
    e.raw(".end_amdhsa_kernel")
    return e

if __name__ == "__main__":
    cfg = Cfg()
    out = "cdna_kernels/" + NAME + ".s"
    for a in sys.argv[1:]:
        k, v = a.split("=", 1)
        if k == "out": out = v
        else:
            old = getattr(cfg, k)
            setattr(cfg, k, (v in ("1", "True")) if isinstance(old, bool) else type(old)(v))
    e = gen(cfg)
    open(out, "w").write(e.text())
    print(out, e.nins, "instrs", {k: v for k, v in sorted(e.stats.items(), key=lambda x: -x[1])[:12]})
```
